```python
import torch

def _softmax(x, axis=-1):
    return torch.softmax(x, dim=axis)
def _gelu(x):
    return torch.nn.functional.gelu(x, approximate="tanh")
def _silu(x):
    return torch.nn.functional.silu(x)
def _sigmoid(x):
    return torch.sigmoid(x)
def _layernorm(x, axis=-1, eps=1e-5):
    m = x.mean(dim=axis, keepdim=True)
    v = x.var(dim=axis, keepdim=True, unbiased=False)
    return (x - m) / torch.sqrt(v + eps)
def _scatter_add(tgt, idx, src, axis=0):
    return tgt.clone().index_add_(axis, idx, src)
def _segment_sum(src, seg, n):
    out = torch.zeros((n,) + src.shape[1:], dtype=src.dtype)
    return out.index_add_(0, seg, src)
def _pad(x, pw):
    flat = tuple(v for pair in reversed(pw) for v in pair)
    return torch.nn.functional.pad(x, flat)

kernel_name = 'interleave_layers__linear_attn_block__moe_arch_mod__prompt'

def setup_inputs():

    _w = (lambda a: (lambda t: t.to(torch.bfloat16) if t.is_floating_point() else t)(torch.as_tensor(a)))
    def _A_setup():
        B, S, D = 1, 2048, 1024
        return {
            "x": _w((lambda *s: torch.randn(*s, dtype=torch.bfloat16) * 0.05)(B, S, D)),
            "wqkv": _w((lambda *s: torch.randn(*s, dtype=torch.bfloat16) * 0.05)(D, 3 * D)),
            "wo": _w((lambda *s: torch.randn(*s, dtype=torch.bfloat16) * 0.05)(D, D)),
        }
    _A_in = _A_setup()

    def _B_setup():
        B, S, D, F, C = 1, 2048, 1024, 3584, 8
        return {
            "x": _w((lambda *s: torch.randn(*s, dtype=torch.bfloat16) * 0.05)(B, S, D)),
            "w_r": _w((lambda *s: torch.randn(*s, dtype=torch.bfloat16) * 0.05)(D)),
            "w_gate": _w((lambda *s: torch.randn(*s, dtype=torch.bfloat16) * 0.05)(D, F)),
            "w_up": _w((lambda *s: torch.randn(*s, dtype=torch.bfloat16) * 0.05)(D, F)),
            "w_down": _w((lambda *s: torch.randn(*s, dtype=torch.bfloat16) * 0.05)(F, D)),
        }
    _B_in = _B_setup()

    return {
        "A_x": _A_in["x"],
        "A_wqkv": _A_in["wqkv"],
        "A_wo": _A_in["wo"],
        "B_x": _B_in["x"],
        "B_w_r": _B_in["w_r"],
        "B_w_gate": _B_in["w_gate"],
        "B_w_up": _B_in["w_up"],
        "B_w_down": _B_in["w_down"],
    }

def reference(A_x, A_wqkv, A_wo, B_x, B_w_r, B_w_gate, B_w_up, B_w_down):
    def _A_ref(x, wqkv, wo):
        B, S, D = x.shape
        H = 32; Dh = D // H
        qkv = (lambda x, *d: x.permute(*d))((x @ wqkv).reshape(B, S, 3, H, Dh), 2, 0, 3, 1, 4)
        q, k, v = qkv[0], qkv[1], qkv[2]
        phi = lambda t: torch.where(t > 0, t + 1, torch.exp(t)) + 1e-6
        pq, pk = phi(q), phi(k)
        kv = torch.einsum("bhsd,bhse->bhde", pk, v)
        z = torch.einsum("bhsd->bhd", pk)
        num = torch.einsum("bhqd,bhde->bhqe", pq, kv)
        den = torch.einsum("bhqd,bhd->bhq", pq, z)[..., None] + 1e-6
        o = num / den
        return (lambda x, *d: x.permute(*d))(o, 0, 2, 1, 3).reshape(B, S, D) @ wo

    def _B_ref(x, w_r, w_gate, w_up, w_down):
        B, S, D = x.shape
        C = 8
        r = x @ w_r
        idx = torch.argsort(-r, axis=-1)[:, :C]
        idx_e = (lambda x, n, axis: torch.repeat_interleave(x, n, dim=axis))(idx.reshape(B, C, 1), D, axis=2)
        x_sel = (lambda x, i, axis: torch.take_along_dim(x, i, dim=axis))(x, idx_e, axis=1)
        g = _silu(x_sel @ w_gate)
        u = x_sel @ w_up
        y = (g * u) @ w_down
        r_sel = _sigmoid((lambda x, i, axis: torch.take_along_dim(x, i, dim=axis))(r, idx, axis=1))
        y = y * r_sel.reshape(B, C, 1)
        b_off = (torch.arange(B) * S).reshape(B, 1)
        flat_idx = (idx + b_off).reshape(B * C)
        zero = (x * 0.0).reshape(B * S, D)
        upd = _scatter_add(zero, flat_idx, y.reshape(B * C, D), axis=0)
        return x + upd.reshape(B, S, D)

    x = A_x
    x = x + _A_ref(_layernorm(x, axis=-1), A_wqkv, A_wo)
    x = x + _B_ref(_layernorm(x, axis=-1), B_w_r, B_w_gate, B_w_up, B_w_down)
    x = x + _A_ref(_layernorm(x, axis=-1), A_wqkv, A_wo)
    x = x + _B_ref(_layernorm(x, axis=-1), B_w_r, B_w_gate, B_w_up, B_w_down)
    return x
```

```python
class K:
    def __init__(self, name):
        self.name = name
        self.lines = []
        self._lab = 0
        self.vgpr_hi = 0
        self.sgpr_hi = 0

    def __call__(self, s):
        for ln in s.strip("\n").split("\n"):
            ln = ln.strip()
            if ln:
                self.lines.append("    " + ln if not ln.endswith(":") else ln)

    def label(self, base="L"):
        self._lab += 1
        return f"{self.name}_{base}{self._lab}"

    def text(self, vgpr=256, sgpr=100, lds_static=0):
        body = "\n".join(self.lines)
        nfv = vgpr
        acc = (nfv + 3) // 4 * 4
        return f"""
.text
.globl {self.name}
.p2align 8
.type {self.name},@function
{self.name}:
{body}
    s_endpgm
.section .rodata,"a"
.p2align 6
.amdhsa_kernel {self.name}
  .amdhsa_next_free_vgpr {nfv}
  .amdhsa_next_free_sgpr {sgpr}
  .amdhsa_accum_offset {acc}
  .amdhsa_group_segment_fixed_size {lds_static}
  .amdhsa_kernarg_size 88
  .amdhsa_user_sgpr_count 2
  .amdhsa_user_sgpr_kernarg_segment_ptr 1
  .amdhsa_system_sgpr_workgroup_id_x 1
.end_amdhsa_kernel
"""


def vr(base, n=1):
    if n == 1:
        return f"v{base}"
    return f"v[{base}:{base + n - 1}]"


def sr(base, n=1):
    if n == 1:
        return f"s{base}"
    return f"s[{base}:{base + n - 1}]"


KA_AX, KA_WQKV, KA_WO, KA_BX, KA_WR, KA_WG, KA_WU, KA_WD, KA_OUT, KA_DBG, KA_WS = [8 * i for i in range(11)]


def srd_from_ptr(k, sdst, sptr, nbytes, off=0):
    if off:
        k(f"s_add_u32 s{sdst}, s{sptr}, 0x{off:x}")
        k(f"s_addc_u32 s{sdst + 1}, s{sptr + 1}, 0")
        k(f"s_and_b32 s{sdst + 1}, s{sdst + 1}, 0xffff")
    else:
        k(f"s_mov_b32 s{sdst}, s{sptr}")
        k(f"s_and_b32 s{sdst + 1}, s{sptr + 1}, 0xffff")
    k(f"s_mov_b32 s{sdst + 2}, 0x{nbytes:x}")
    k(f"s_mov_b32 s{sdst + 3}, 0x20000")
```

```python
MB = 1 << 20
WS_WQKV_P = 0x0000000
WS_WO_P = 0x0600000
WS_XN_P = 0x0800000
WS_PQ_P = 0x0C00000
WS_O_P = 0x1000000
WS_X1 = 0x1400000
WS_X2 = 0x1800000
WS_XN2 = 0x1C00000
WS_KVP = 0x2000000
WS_ZP = 0x2200000
WS_R = 0x2210000
WS_SEL = 0x2214000
WS_GU_P = 0x2300000
WS_Y_P = 0x2500000
WS_BYTES = 268435456

S = 2048
D = 1024
F = 3584
```

```python
import sys
sys.path.insert(0, "dev")
from asmlib import *
from layout import *

F32_1EM5 = 0x3727C5AC
F32_1EM6 = 0x358637BD
F32_INV1024 = 0x3A800000
F32_LOG2E = 0x3FB8AA3B


def reduce8_add(k, v, t):
    k(f"s_nop 1")
    k(f"v_add_f32_dpp v{v}, v{v}, v{v} quad_perm:[1,0,3,2] row_mask:0xf bank_mask:0xf")
    k(f"s_nop 1")
    k(f"v_add_f32_dpp v{v}, v{v}, v{v} quad_perm:[2,3,0,1] row_mask:0xf bank_mask:0xf")
    k(f"s_nop 1")
    k(f"v_add_f32_dpp v{v}, v{v}, v{v} row_half_mirror row_mask:0xf bank_mask:0xf")


def ln8(k, X, OUT, T):
    lo, hi, s0, s1, mean, mb, sd, rs, q0, q1, e0, e1 = [T + i for i in range(12)]
    k(f"v_mov_b32 v{s0}, 0")
    k(f"v_mov_b32 v{s1}, 0")
    for p in range(64):
        k(f"v_lshlrev_b32 v{lo}, 16, v{X + p}")
        k(f"v_and_b32 v{hi}, 0xffff0000, v{X + p}")
        k(f"v_add_f32 v{s0}, v{s0}, v{lo}")
        k(f"v_add_f32 v{s1}, v{s1}, v{hi}")
    k(f"v_add_f32 v{s0}, v{s0}, v{s1}")
    reduce8_add(k, s0, None)
    k(f"v_mul_f32 v{mean}, 0x{F32_INV1024:x}, v{s0}")
    k(f"v_mov_b32 v{s0}, 0")
    k(f"v_mov_b32 v{s1}, 0")
    for p in range(64):
        k(f"v_lshlrev_b32 v{lo}, 16, v{X + p}")
        k(f"v_and_b32 v{hi}, 0xffff0000, v{X + p}")
        k(f"v_sub_f32 v{lo}, v{lo}, v{mean}")
        k(f"v_sub_f32 v{hi}, v{hi}, v{mean}")
        k(f"v_fmac_f32 v{s0}, v{lo}, v{lo}")
        k(f"v_fmac_f32 v{s1}, v{hi}, v{hi}")
    k(f"v_add_f32 v{s0}, v{s0}, v{s1}")
    reduce8_add(k, s0, None)
    k(f"v_mul_f32 v{s0}, 0x{F32_INV1024:x}, v{s0}")
    k(f"v_cvt_pk_bf16_f32 v{q0}, v{mean}, v{s0}")
    k(f"v_lshlrev_b32 v{mb}, 16, v{q0}")
    k(f"v_and_b32 v{s0}, 0xffff0000, v{q0}")
    k(f"v_add_f32 v{s0}, 0x{F32_1EM5:x}, v{s0}")
    k(f"v_cvt_pk_bf16_f32 v{s0}, v{s0}, v{s0}")
    k(f"v_lshlrev_b32 v{s0}, 16, v{s0}")
    k(f"v_sqrt_f32 v{s0}, v{s0}")
    k(f"s_nop 0")
    k(f"v_cvt_pk_bf16_f32 v{s0}, v{s0}, v{s0}")
    k(f"v_lshlrev_b32 v{sd}, 16, v{s0}")
    k(f"v_rcp_f32 v{rs}, v{sd}")
    k(f"s_nop 0")
    for p in range(64):
        k(f"v_lshlrev_b32 v{lo}, 16, v{X + p}")
        k(f"v_and_b32 v{hi}, 0xffff0000, v{X + p}")
        k(f"v_sub_f32 v{lo}, v{lo}, v{mb}")
        k(f"v_sub_f32 v{hi}, v{hi}, v{mb}")
        k(f"v_cvt_pk_bf16_f32 v{lo}, v{lo}, v{hi}")
        k(f"v_and_b32 v{hi}, 0xffff0000, v{lo}")
        k(f"v_lshlrev_b32 v{lo}, 16, v{lo}")
        k(f"v_mul_f32 v{q0}, v{lo}, v{rs}")
        k(f"v_mul_f32 v{q1}, v{hi}, v{rs}")
        k(f"v_fma_f32 v{e0}, -v{q0}, v{sd}, v{lo}")
        k(f"v_fma_f32 v{e1}, -v{q1}, v{sd}, v{hi}")
        k(f"v_fma_f32 v{q0}, v{e0}, v{rs}, v{q0}")
        k(f"v_fma_f32 v{q1}, v{e1}, v{rs}, v{q1}")
        k(f"v_cvt_pk_bf16_f32 v{OUT + p}, v{q0}, v{q1}")


def store_xn_packed(k, SRC, srd, vtmp, vlane, srow_base, stmp):
    a, b = vtmp, vtmp + 1
    k(f"v_lshrrev_b32 v{a}, 3, v{vlane}")
    k(f"v_add_u32 v{a}, s{srow_base}, v{a}")
    k(f"v_and_b32 v{b}, 31, v{a}")
    k(f"v_lshrrev_b32 v{a}, 5, v{a}")
    k(f"v_lshlrev_b32 v{a}, 16, v{a}")
    k(f"v_lshl_add_u32 v{a}, v{b}, 4, v{a}")
    k(f"v_and_b32 v{b}, 1, v{vlane}")
    k(f"v_lshl_add_u32 v{a}, v{b}, 9, v{a}")
    k(f"v_bfe_u32 v{b}, v{vlane}, 1, 2")
    k(f"v_lshl_add_u32 v{a}, v{b}, 10, v{a}")
    for it in range(16):
        k(f"s_mov_b32 s{stmp}, 0x{it * 4096:x}")
        k(f"buffer_store_dwordx4 v[{SRC + 4 * it}:{SRC + 4 * it + 3}], v{a}, s[{srd}:{srd + 3}], s{stmp} offen")


def gen_prep():
    k = K("prep_kernel")
    LN = k.label("ln")
    WO = k.label("wo")
    ST = k.label("st")
    EX = k.label("exit")
    k(f"""
    s_cmp_ge_u32 s2, 320
    s_cbranch_scc1 {EX}
    s_load_dwordx2 s[4:5], s[0:1], {KA_AX}
    s_load_dwordx2 s[6:7], s[0:1], {KA_WQKV}
    s_load_dwordx2 s[8:9], s[0:1], {KA_WO}
    s_load_dwordx2 s[10:11], s[0:1], {KA_WS}
    v_lshrrev_b32 v1, 6, v0
    v_and_b32 v0, 63, v0
    s_nop 0
    v_readfirstlane_b32 s20, v1
    s_waitcnt lgkmcnt(0)
    s_cmp_ge_u32 s2, 256
    s_cbranch_scc1 {LN}
    """)
    k(f"""
    s_lshl_b32 s21, s2, 2
    s_add_u32 s21, s21, s20
    s_lshl_b32 s21, s21, 3
    v_lshrrev_b32 v2, 5, v0
    v_and_b32 v3, 31, v0
    s_cmp_ge_u32 s21, 6144
    s_cbranch_scc1 {WO}
    """)
    srd_from_ptr(k, 12, 6, 1024 * 3072 * 2)
    k(f"""
    s_lshr_b32 s22, s21, 6
    s_and_b32 s23, s21, 63
    s_mul_i32 s23, s23, 98304
    s_lshl_b32 s22, s22, 6
    s_add_u32 s22, s22, s23
    s_mov_b32 s23, 98304
    v_mul_u32_u24 v4, 49152, v2
    v_lshl_add_u32 v4, v3, 1, v4
    """)
    for j in range(8):
        k(f"s_mov_b32 s{24 + j}, {j * 6144}")
    k(f"s_branch {ST}")
    k(f"{WO}:")
    srd_from_ptr(k, 12, 8, 1024 * 1024 * 2)
    k(f"""
    s_sub_u32 s22, s21, 6144
    s_and_b32 s23, s22, 63
    s_lshr_b32 s22, s22, 6
    s_lshl_b32 s23, s23, 15
    s_lshl_b32 s22, s22, 6
    s_add_u32 s22, s22, s23
    s_mov_b32 s23, 32768
    v_bfe_u32 v5, v3, 2, 1
    v_lshlrev_b32 v5, 4, v5
    v_and_b32 v6, 3, v3
    v_add_u32 v5, v5, v6
    v_lshrrev_b32 v6, 3, v3
    v_lshl_add_u32 v5, v6, 2, v5
    v_lshlrev_b32 v4, 13, v2
    v_lshl_add_u32 v4, v5, 1, v4
    """)
    for j in range(8):
        k(f"s_mov_b32 s{24 + j}, {(8 * (j >> 2) + (j & 3)) * 2048}")
    k(f"{ST}:")
    srd_from_ptr(k, 16, 10, WS_WQKV_P + 8 * MB, off=0)
    for i in range(8):
        k(f"v_add_u32 v5, s22, v4")
        for j in range(8):
            k(f"buffer_load_ushort v{16 + 8 * i + j}, v5, s[12:15], s{24 + j} offen")
        k(f"s_add_u32 s22, s22, s23")
    k(f"""
    s_lshl_b32 s21, s21, 10
    v_lshlrev_b32 v6, 4, v0
    """)
    for i in range(8):
        k(f"s_waitcnt vmcnt({8 * (7 - i)})")
        for q in range(4):
            k(f"v_lshl_or_b32 v{80 + 4 * i + q}, v{16 + 8 * i + 2 * q + 1}, 16, v{16 + 8 * i + 2 * q}")
        k(f"buffer_store_dwordx4 v[{80 + 4 * i}:{83 + 4 * i}], v6, s[16:19], s21 offen")
        k(f"s_add_u32 s21, s21, 1024")
    k(f"s_branch {EX}")
    k(f"{LN}:")
    srd_from_ptr(k, 12, 4, S * D * 2)
    srd_from_ptr(k, 16, 10, 4 * MB, off=WS_XN_P)
    k(f"""
    s_sub_u32 s21, s2, 256
    s_lshl_b32 s21, s21, 2
    s_add_u32 s21, s21, s20
    s_lshl_b32 s21, s21, 3
    v_lshrrev_b32 v2, 3, v0
    v_add_u32 v2, s21, v2
    v_lshlrev_b32 v2, 11, v2
    v_and_b32 v3, 7, v0
    v_lshl_add_u32 v2, v3, 4, v2
    """)
    X, OUT, T = 16, 80, 4
    for it in range(16):
        k(f"buffer_load_dwordx4 v[{X + 4 * it}:{X + 4 * it + 3}], v2, s[12:15], 0 offen offset:{it * 128}")
    k("s_waitcnt vmcnt(0)")
    ln8(k, X, OUT, T)
    store_xn_packed(k, OUT, 16, 2, 0, 21, 22)
    k(f"{EX}:")
    return k.text(vgpr=144, sgpr=40)


def phi_pair(k, a0, a1, dst, T, zsum=None):
    t0, t1, e0, e1, p0, p1 = [T + i for i in range(6)]
    k(f"""
    v_cvt_pk_bf16_f32 v{e0}, v{a0}, v{a1}
    v_lshlrev_b32 v{t0}, 16, v{e0}
    v_and_b32 v{t1}, 0xffff0000, v{e0}
    v_mul_f32 v{e0}, 0x{F32_LOG2E:x}, v{t0}
    v_mul_f32 v{e1}, 0x{F32_LOG2E:x}, v{t1}
    v_exp_f32 v{e0}, v{e0}
    v_exp_f32 v{e1}, v{e1}
    v_add_f32 v{p0}, 1.0, v{t0}
    v_add_f32 v{p1}, 1.0, v{t1}
    v_cmp_lt_f32 vcc, 0, v{t0}
    s_nop 1
    v_cndmask_b32 v{e0}, v{e0}, v{p0}, vcc
    v_cmp_lt_f32 vcc, 0, v{t1}
    s_nop 1
    v_cndmask_b32 v{e1}, v{e1}, v{p1}, vcc
    v_cvt_pk_bf16_f32 v{e0}, v{e0}, v{e1}
    v_lshlrev_b32 v{t0}, 16, v{e0}
    v_and_b32 v{t1}, 0xffff0000, v{e0}
    v_add_f32 v{t0}, 0x{F32_1EM6:x}, v{t0}
    v_add_f32 v{t1}, 0x{F32_1EM6:x}, v{t1}
    v_cvt_pk_bf16_f32 v{dst}, v{t0}, v{t1}
    """)
    if zsum is not None:
        k(f"""
        v_lshlrev_b32 v{t0}, 16, v{dst}
        v_and_b32 v{t1}, 0xffff0000, v{dst}
        v_add_f32 v{zsum}, v{zsum}, v{t0}
        v_add_f32 v{zsum}, v{zsum}, v{t1}
        """)


K1_STAGE = 40960


def gen_qkv():
    k = K("qkv_kernel")
    EX = k.label("exit")
    LOOP = k.label("loop")
    X, Y = 16, 36
    ACC = 64
    Q0, Q1, K0, K1_, V0, V1 = [ACC + 16 * i for i in range(6)]
    vlane, vwoff, vrdA, vrdB, vrdAc, vrdBc = 0, 1, 2, 3, 4, 5
    TOFF = 40
    k(f"""
    s_cmp_ge_u32 s2, 256
    s_cbranch_scc1 {EX}
    s_load_dwordx2 s[10:11], s[0:1], {KA_WS}
    v_lshrrev_b32 v1, 6, v0
    v_and_b32 v0, 63, v0
    s_nop 0
    v_readfirstlane_b32 s20, v1
    s_and_b32 s21, s2, 7
    s_lshr_b32 s22, s2, 3
    s_and_b32 s23, s21, 1
    s_lshl_b32 s23, s23, 3
    s_and_b32 s24, s22, 7
    s_add_u32 s23, s23, s24
    s_lshr_b32 s24, s21, 1
    s_lshl_b32 s24, s24, 2
    s_lshr_b32 s25, s22, 3
    s_add_u32 s24, s24, s25
    s_lshr_b32 s25, s20, 1
    s_and_b32 s26, s20, 1
    s_waitcnt lgkmcnt(0)
    """)
    srd_from_ptr(k, 12, 10, 0x1400000)
    k(f"s_lshl_b32 s27, s23, 18")
    for t in range(4):
        k(f"s_add_u32 s{TOFF + t}, s27, 0x{WS_XN_P + t * 65536:x}")
    k(f"s_lshl_b32 s27, s24, 17")
    for u in range(6):
        k(f"s_add_u32 s{TOFF + 4 + u}, s27, 0x{WS_WQKV_P + ((u >> 1) * 32 + (u & 1)) * 65536:x}")
    k(f"""
    s_lshl_b32 s28, s20, 10
    v_lshlrev_b32 v{vwoff}, 4, v{vlane}
    v_add_u32 v{vwoff}, s28, v{vwoff}
    v_lshlrev_b32 v{vrdA}, 4, v{vlane}
    s_lshl_b32 s29, s25, 13
    v_add_u32 v{vrdA}, s29, v{vrdA}
    s_lshl_b32 s29, s26, 12
    s_add_u32 s29, s29, 16384
    v_lshlrev_b32 v{vrdB}, 4, v{vlane}
    v_add_u32 v{vrdB}, s29, v{vrdB}
    """)

    def dma_stage(sbuf):
        for t in range(10):
            k(f"s_add_u32 s30, {sbuf}, 0x{t * 4096:x}")
            k(f"s_add_u32 m0, s30, s28")
            k(f"s_nop 0")
            k(f"buffer_load_dwordx4 v{vwoff}, s[12:15], s{TOFF + t} offen lds")
            k(f"s_add_u32 s{TOFF + t}, s{TOFF + t}, 4096")

    def reads(dst, s):
        k(f"ds_read_b128 v[{dst}:{dst + 3}], v{vrdAc} offset:{s * 1024}")
        k(f"ds_read_b128 v[{dst + 4}:{dst + 7}], v{vrdAc} offset:{4096 + s * 1024}")
        k(f"ds_read_b128 v[{dst + 8}:{dst + 11}], v{vrdBc} offset:{s * 1024}")
        k(f"ds_read_b128 v[{dst + 12}:{dst + 15}], v{vrdBc} offset:{8192 + s * 1024}")
        k(f"ds_read_b128 v[{dst + 16}:{dst + 19}], v{vrdBc} offset:{16384 + s * 1024}")

    def mfmas(f, first=False):
        a0, a1, bq, bk, bv = f, f + 4, f + 8, f + 12, f + 16
        for (acc, A, B) in ((Q0, bq, a0), (Q1, bq, a1), (K0, a0, bk), (K1_, a1, bk), (V0, a0, bv), (V1, a1, bv)):
            c = "0" if first else f"v[{acc}:{acc + 15}]"
            k(f"v_mfma_f32_32x32x16_bf16 v[{acc}:{acc + 15}], v[{A}:{A + 3}], v[{B}:{B + 3}], {c}")

    k("s_mov_b32 s31, 0")
    dma_stage("s31")
    k(f"s_mov_b32 s31, {K1_STAGE}")
    dma_stage("s31")
    k(f"s_mov_b32 s31, {2 * K1_STAGE}")
    dma_stage("s31")
    k(f"""
    s_mov_b32 s32, 0
    s_mov_b32 s33, 0
    s_waitcnt vmcnt(20)
    s_barrier
    v_add_u32 v{vrdAc}, s33, v{vrdA}
    v_add_u32 v{vrdBc}, s33, v{vrdB}
    """)
    reads(X, 0)
    for i in range(96):
        k(f"v_mov_b32 v{ACC + i}, 0")
    k(f"{LOOP}:")
    k("s_waitcnt lgkmcnt(0)")
    reads(Y, 1)
    mfmas(X)
    k("s_waitcnt lgkmcnt(0)")
    reads(X, 2)
    mfmas(Y)
    k("s_waitcnt lgkmcnt(0)")
    reads(Y, 3)
    mfmas(X)
    k("s_waitcnt lgkmcnt(0)")
    LAST = k.label("last")
    W10 = k.label("w10")
    WD = k.label("wd")
    NOD = k.label("nodma")
    k(f"""
    s_cmp_eq_u32 s32, 15
    s_cbranch_scc1 {LAST}
    s_cmp_lt_u32 s32, 14
    s_cbranch_scc1 {W10}
    s_waitcnt vmcnt(0)
    s_branch {WD}
    {W10}:
    s_waitcnt vmcnt(10)
    {WD}:
    s_barrier
    s_cmp_ge_u32 s32, 13
    s_cbranch_scc1 {NOD}
    """)
    dma_stage("s33")
    k(f"""
    {NOD}:
    s_add_u32 s33, s33, {K1_STAGE}
    s_cmp_eq_u32 s33, {3 * K1_STAGE}
    s_cselect_b32 s33, 0, s33
    v_add_u32 v{vrdAc}, s33, v{vrdA}
    v_add_u32 v{vrdBc}, s33, v{vrdB}
    """)
    reads(X, 0)
    mfmas(Y)
    k(f"""
    s_add_u32 s32, s32, 1
    s_branch {LOOP}
    {LAST}:
    """)
    mfmas(Y)
    k("s_nop 15")
    k("s_nop 15")
    T = 8
    PK = 160
    PV = 176
    PQ = 192
    ZS = 200
    KVA = 208
    k(f"v_mov_b32 v{ZS}, 0")
    srd_from_ptr(k, 16, 10, 4 * MB, off=WS_PQ_P)
    k(f"""
    s_lshl_b32 s27, s23, 2
    s_lshl_b32 s29, s25, 1
    s_add_u32 s27, s27, s29
    s_lshl_b32 s27, s27, 16
    s_lshl_b32 s29, s24, 1
    s_add_u32 s29, s29, s26
    s_lshl_b32 s30, s29, 11
    s_add_u32 s27, s27, s30
    v_lshlrev_b32 v6, 4, v{vlane}
    """)
    for t, acc in enumerate((Q0, Q1)):
        for q in range(8):
            phi_pair(k, acc + 2 * q, acc + 2 * q + 1, PQ + q, T)
        k(f"buffer_store_dwordx4 v[{PQ}:{PQ + 3}], v6, s[16:19], s27 offen")
        k(f"buffer_store_dwordx4 v[{PQ + 4}:{PQ + 7}], v6, s[16:19], s27 offen offset:1024")
        if t == 0:
            k("s_nop 1")
            k(f"s_add_u32 s27, s27, 65536")
    for t, acc in enumerate((K0, K1_)):
        for q in range(8):
            phi_pair(k, acc + 2 * q, acc + 2 * q + 1, PK + 8 * t + q, T, zsum=ZS)
    for t, acc in enumerate((V0, V1)):
        for q in range(8):
            k(f"v_cvt_pk_bf16_f32 v{PV + 8 * t + q}, v{acc + 2 * q}, v{acc + 2 * q + 1}")
    k("s_nop 1")
    first = True
    for t in range(2):
        for c in range(2):
            a = PK + 8 * t + 4 * c
            b = PV + 8 * t + 4 * c
            cc = "0" if first else f"v[{KVA}:{KVA + 15}]"
            k(f"v_mfma_f32_32x32x16_bf16 v[{KVA}:{KVA + 15}], v[{a}:{a + 3}], v[{b}:{b + 3}], {cc}")
            first = False
    k(f"""
    v_mov_b32 v{ZS + 1}, v{ZS}
    s_nop 1
    v_permlane32_swap_b32 v{ZS}, v{ZS + 1}
    v_add_f32 v{ZS}, v{ZS}, v{ZS + 1}
    s_nop 15
    s_barrier
    """)
    RD = k.label("rd")
    k(f"""
    s_lshl_b32 s27, s26, 13
    v_lshlrev_b32 v7, 2, v{vlane}
    v_add_u32 v7, s27, v7
    v_add_u32 v6, s27, v6
    s_cmp_eq_u32 s25, 0
    s_cbranch_scc1 {RD}
    """)
    for iq in range(4):
        k(f"ds_write_b128 v6, v[{KVA + 4 * iq}:{KVA + 4 * iq + 3}] offset:{iq * 1024}")
    k(f"""
    ds_write_b32 v7, v{ZS} offset:4096
    s_waitcnt lgkmcnt(0)
    s_barrier
    s_branch {EX}
    {RD}:
    s_barrier
    """)
    for iq in range(4):
        k(f"ds_read_b128 v[{PK + 4 * iq}:{PK + 4 * iq + 3}], v6 offset:{iq * 1024}")
    k(f"ds_read_b32 v{ZS + 1}, v7 offset:4096")
    srd_from_ptr(k, 16, 10, 2 * MB, off=WS_KVP)
    srd_from_ptr(k, 36, 10, 64 * 1024, off=WS_ZP)
    k(f"""
    s_lshl_b32 s27, s23, 5
    s_add_u32 s27, s27, s29
    s_lshl_b32 s30, s27, 7
    s_lshl_b32 s27, s27, 12
    v_lshlrev_b32 v6, 4, v{vlane}
    v_lshlrev_b32 v7, 2, v{vlane}
    s_waitcnt lgkmcnt(0)
    """)
    for i in range(16):
        k(f"v_add_f32 v{KVA + i}, v{KVA + i}, v{PK + i}")
    k(f"v_add_f32 v{ZS}, v{ZS}, v{ZS + 1}")
    for iq in range(4):
        k(f"buffer_store_dwordx4 v[{KVA + 4 * iq}:{KVA + 4 * iq + 3}], v6, s[16:19], s27 offen offset:{iq * 1024}")
    k(f"""
    v_cmp_gt_u32 vcc, 32, v{vlane}
    s_and_saveexec_b64 s[34:35], vcc
    buffer_store_dword v{ZS}, v7, s[36:39], s30 offen
    """)
    k(f"{EX}:")
    return k.text(vgpr=224, sgpr=56)


def div_bf16_pair(k, n0, n1, den, rden, dst, T):
    q0, q1, e0, e1 = T, T + 1, T + 2, T + 3
    k(f"""
    v_mul_f32 v{q0}, v{n0}, v{rden}
    v_mul_f32 v{q1}, v{n1}, v{rden}
    v_fma_f32 v{e0}, -v{q0}, v{den}, v{n0}
    v_fma_f32 v{e1}, -v{q1}, v{den}, v{n1}
    v_fma_f32 v{q0}, v{e0}, v{rden}, v{q0}
    v_fma_f32 v{q1}, v{e1}, v{rden}, v{q1}
    v_cvt_pk_bf16_f32 v{dst}, v{q0}, v{q1}
    """)


def gen_ko():
    k = K("ko_kernel")
    EX = k.label("exit")
    k(f"""
    s_cmp_ge_u32 s2, 256
    s_cbranch_scc1 {EX}
    s_load_dwordx2 s[10:11], s[0:1], {KA_WS}
    v_lshrrev_b32 v1, 6, v0
    v_and_b32 v0, 63, v0
    s_nop 0
    v_readfirstlane_b32 s20, v1
    s_and_b32 s21, s2, 31
    s_lshr_b32 s22, s2, 5
    v_lshlrev_b32 v2, 4, v0
    v_and_b32 v3, 31, v0
    v_lshlrev_b32 v3, 2, v3
    s_waitcnt lgkmcnt(0)
    """)
    srd_from_ptr(k, 12, 10, 2 * MB, off=WS_KVP)
    srd_from_ptr(k, 16, 10, 64 * 1024, off=WS_ZP)
    srd_from_ptr(k, 24, 10, 4 * MB, off=WS_PQ_P)
    srd_from_ptr(k, 28, 10, 4 * MB, off=WS_O_P)
    k(f"""
    s_lshl_b32 s23, s20, 2
    s_lshl_b32 s23, s23, 5
    s_add_u32 s23, s23, s21
    s_lshl_b32 s32, s23, 7
    s_lshl_b32 s23, s23, 12
    """)
    for r in range(4):
        for iq in range(4):
            k(f"buffer_load_dwordx4 v[{16 + 16 * r + 4 * iq}:{19 + 16 * r + 4 * iq}], v2, s[12:15], s23 offen offset:{iq * 1024}")
        k(f"buffer_load_dword v{96 + r}, v3, s[16:19], s32 offen")
        k(f"s_add_u32 s23, s23, {32 * 4096}")
        k(f"s_add_u32 s32, s32, {32 * 128}")
    PQF = 104
    k(f"""
    s_lshl_b32 s33, s22, 3
    s_lshl_b32 s34, s20, 1
    s_add_u32 s33, s33, s34
    s_lshl_b32 s33, s33, 16
    s_lshl_b32 s34, s21, 11
    s_add_u32 s33, s33, s34
    s_add_u32 s34, s33, 65536
    """)
    for t in range(2):
        for blk in range(2):
            r = PQF + 8 * t + 4 * blk
            k(f"buffer_load_dwordx4 v[{r}:{r + 3}], v2, s[24:27], s{33 + t} offen offset:{blk * 1024}")
    k("s_waitcnt vmcnt(4)")
    for i in range(16):
        k(f"v_add_f32 v{16 + i}, v{16 + i}, v{32 + i}")
        k(f"v_add_f32 v{48 + i}, v{48 + i}, v{64 + i}")
        k(f"v_add_f32 v{16 + i}, v{16 + i}, v{48 + i}")
    k(f"""
    v_add_f32 v96, v96, v97
    v_add_f32 v98, v98, v99
    v_add_f32 v96, v96, v98
    s_lshl_b32 s35, s20, 12
    v_add_u32 v4, s35, v2
    s_lshl_b32 s35, s20, 7
    v_add_u32 v5, s35, v3
    """)
    for iq in range(4):
        k(f"ds_write_b128 v4, v[{16 + 4 * iq}:{19 + 4 * iq}] offset:{iq * 1024}")
    k(f"""
    ds_write_b32 v5, v96 offset:16384
    s_waitcnt lgkmcnt(0)
    s_barrier
    """)
    for w in range(4):
        for iq in range(4):
            k(f"ds_read_b128 v[{16 + 16 * w + 4 * iq}:{19 + 16 * w + 4 * iq}], v2 offset:{w * 4096 + iq * 1024}")
        k(f"ds_read_b32 v{96 + w}, v3 offset:{16384 + w * 128}")
    k("s_waitcnt lgkmcnt(0)")
    KVA, ZA = 80, 88
    for i in range(16):
        k(f"v_add_f32 v{16 + i}, v{16 + i}, v{32 + i}")
        k(f"v_add_f32 v{48 + i}, v{48 + i}, v{64 + i}")
        k(f"v_add_f32 v{16 + i}, v{16 + i}, v{48 + i}")
    for q in range(8):
        k(f"v_cvt_pk_bf16_f32 v{KVA + q}, v{16 + 2 * q}, v{17 + 2 * q}")
    k(f"""
    v_add_f32 v96, v96, v97
    v_add_f32 v98, v98, v99
    v_add_f32 v96, v96, v98
    v_cvt_pk_bf16_f32 v96, v96, v96
    v_lshlrev_b32 v96, 16, v96
    ds_write_b32 v5, v96 offset:17408
    v_lshrrev_b32 v6, 5, v0
    v_lshlrev_b32 v6, 4, v6
    s_lshl_b32 s35, s20, 7
    v_add_u32 v6, s35, v6
    s_waitcnt lgkmcnt(0)
    """)
    for blk in range(2):
        for jq in range(2):
            r = 16 + 8 * blk + 4 * jq
            k(f"ds_read_b128 v[{r}:{r + 3}], v6 offset:{17408 + (16 * blk + 8 * jq) * 4}")
    k("s_waitcnt lgkmcnt(0)")
    for blk in range(2):
        for q in range(4):
            k(f"v_cvt_pk_bf16_f32 v{ZA + 4 * blk + q}, v{16 + 8 * blk + 2 * q}, v{17 + 8 * blk + 2 * q}")
    k("s_waitcnt vmcnt(0)")
    k("s_nop 1")
    NUM, DEN = 16, 48
    for t in range(2):
        num, den = NUM + 16 * t, DEN + 16 * t
        for blk in range(2):
            p = PQF + 8 * t + 4 * blk
            c = "0" if blk == 0 else f"v[{num}:{num + 15}]"
            k(f"v_mfma_f32_32x32x16_bf16 v[{num}:{num + 15}], v[{KVA + 4 * blk}:{KVA + 4 * blk + 3}], v[{p}:{p + 3}], {c}")
            c = "0" if blk == 0 else f"v[{den}:{den + 15}]"
            k(f"v_mfma_f32_32x32x16_bf16 v[{den}:{den + 15}], v[{ZA + 4 * blk}:{ZA + 4 * blk + 3}], v[{p}:{p + 3}], {c}")
    k("s_nop 15")
    T = 8
    OUTR = 120
    for t in range(2):
        num, den = NUM + 16 * t, DEN + 16 * t
        k(f"""
        v_cvt_pk_bf16_f32 v{T}, v{den}, v{den}
        v_lshlrev_b32 v{T}, 16, v{T}
        v_add_f32 v{T}, 0x{F32_1EM6:x}, v{T}
        v_cvt_pk_bf16_f32 v{T}, v{T}, v{T}
        v_lshlrev_b32 v{T}, 16, v{T}
        v_rcp_f32 v{T + 1}, v{T}
        s_nop 0
        """)
        for q in range(8):
            k(f"""
            v_cvt_pk_bf16_f32 v{T + 2}, v{num + 2 * q}, v{num + 2 * q + 1}
            v_and_b32 v{T + 3}, 0xffff0000, v{T + 2}
            v_lshlrev_b32 v{T + 2}, 16, v{T + 2}
            """)
            div_bf16_pair(k, T + 2, T + 3, T, T + 1, OUTR + 8 * t + q, T + 4)
        for blk in range(2):
            r = OUTR + 8 * t + 4 * blk
            k(f"buffer_store_dwordx4 v[{r}:{r + 3}], v2, s[28:31], s{33 + t} offen offset:{blk * 1024}")
    k(f"{EX}:")
    return k.text(vgpr=136, sgpr=40)


K3_STAGE = 24576


def gen_wo(layer):
    k = K(f"wo{layer}_kernel")
    EX = k.label("exit")
    LOOP = k.label("loop")
    X, Y = 16, 28
    ACC = 48
    A0, A1 = ACC, ACC + 16
    vlane, vwoff, vrdA, vrdB, vrdAc, vrdBc = 0, 1, 2, 3, 4, 5
    TOFF = 40
    k(f"""
    s_cmp_ge_u32 s2, 256
    s_cbranch_scc1 {EX}
    s_load_dwordx2 s[10:11], s[0:1], {KA_WS}
    s_load_dwordx2 s[8:9], s[0:1], {KA_AX}
    v_lshrrev_b32 v1, 6, v0
    v_and_b32 v0, 63, v0
    s_nop 0
    v_readfirstlane_b32 s20, v1
    s_and_b32 s21, s2, 7
    s_lshr_b32 s22, s2, 3
    s_and_b32 s23, s21, 1
    s_lshl_b32 s23, s23, 3
    s_and_b32 s24, s22, 7
    s_add_u32 s23, s23, s24
    s_lshr_b32 s24, s21, 1
    s_lshl_b32 s24, s24, 2
    s_lshr_b32 s25, s22, 3
    s_add_u32 s24, s24, s25
    s_lshr_b32 s25, s20, 1
    s_and_b32 s26, s20, 1
    s_waitcnt lgkmcnt(0)
    """)
    srd_from_ptr(k, 12, 10, 0x1400000)
    k(f"s_lshl_b32 s27, s23, 18")
    for t in range(4):
        k(f"s_add_u32 s{TOFF + t}, s27, 0x{WS_O_P + t * 65536:x}")
    k(f"s_lshl_b32 s27, s24, 17")
    for u in range(2):
        k(f"s_add_u32 s{TOFF + 4 + u}, s27, 0x{WS_WO_P + u * 65536:x}")
    k(f"""
    s_lshl_b32 s28, s20, 10
    v_lshlrev_b32 v{vwoff}, 4, v{vlane}
    v_add_u32 v{vwoff}, s28, v{vwoff}
    v_lshlrev_b32 v{vrdA}, 4, v{vlane}
    s_lshl_b32 s29, s25, 13
    v_add_u32 v{vrdA}, s29, v{vrdA}
    s_lshl_b32 s29, s26, 12
    s_add_u32 s29, s29, 16384
    v_lshlrev_b32 v{vrdB}, 4, v{vlane}
    v_add_u32 v{vrdB}, s29, v{vrdB}
    """)

    def dma_stage(sbuf):
        for t in range(6):
            k(f"s_add_u32 s30, {sbuf}, 0x{t * 4096:x}")
            k(f"s_add_u32 m0, s30, s28")
            k(f"s_nop 0")
            k(f"buffer_load_dwordx4 v{vwoff}, s[12:15], s{TOFF + t} offen lds")
            k(f"s_add_u32 s{TOFF + t}, s{TOFF + t}, 4096")

    def reads(dst, s):
        k(f"ds_read_b128 v[{dst}:{dst + 3}], v{vrdAc} offset:{s * 1024}")
        k(f"ds_read_b128 v[{dst + 4}:{dst + 7}], v{vrdAc} offset:{4096 + s * 1024}")
        k(f"ds_read_b128 v[{dst + 8}:{dst + 11}], v{vrdBc} offset:{s * 1024}")

    def mfmas(f):
        a0, a1, b = f, f + 4, f + 8
        for (acc, B) in ((A0, a0), (A1, a1)):
            k(f"v_mfma_f32_32x32x16_bf16 v[{acc}:{acc + 15}], v[{b}:{b + 3}], v[{B}:{B + 3}], v[{acc}:{acc + 15}]")

    k("s_mov_b32 s31, 0")
    dma_stage("s31")
    k(f"s_mov_b32 s31, {K3_STAGE}")
    dma_stage("s31")
    k(f"s_mov_b32 s31, {2 * K3_STAGE}")
    dma_stage("s31")
    k(f"""
    s_mov_b32 s32, 0
    s_mov_b32 s33, 0
    s_waitcnt vmcnt(12)
    s_barrier
    v_add_u32 v{vrdAc}, s33, v{vrdA}
    v_add_u32 v{vrdBc}, s33, v{vrdB}
    """)
    reads(X, 0)
    for i in range(32):
        k(f"v_mov_b32 v{ACC + i}, 0")
    k(f"{LOOP}:")
    k("s_waitcnt lgkmcnt(0)")
    reads(Y, 1)
    mfmas(X)
    k("s_waitcnt lgkmcnt(0)")
    reads(X, 2)
    mfmas(Y)
    k("s_waitcnt lgkmcnt(0)")
    reads(Y, 3)
    mfmas(X)
    k("s_waitcnt lgkmcnt(0)")
    LAST = k.label("last")
    W10 = k.label("w6")
    WD = k.label("wd")
    NOD = k.label("nodma")
    k(f"""
    s_cmp_eq_u32 s32, 15
    s_cbranch_scc1 {LAST}
    s_cmp_lt_u32 s32, 14
    s_cbranch_scc1 {W10}
    s_waitcnt vmcnt(0)
    s_branch {WD}
    {W10}:
    s_waitcnt vmcnt(6)
    {WD}:
    s_barrier
    s_cmp_ge_u32 s32, 13
    s_cbranch_scc1 {NOD}
    """)
    dma_stage("s33")
    k(f"""
    {NOD}:
    s_add_u32 s33, s33, {K3_STAGE}
    s_cmp_eq_u32 s33, {3 * K3_STAGE}
    s_cselect_b32 s33, 0, s33
    v_add_u32 v{vrdAc}, s33, v{vrdA}
    v_add_u32 v{vrdBc}, s33, v{vrdB}
    """)
    reads(X, 0)
    mfmas(Y)
    k(f"""
    s_add_u32 s32, s32, 1
    s_branch {LOOP}
    {LAST}:
    """)
    mfmas(Y)
    if layer == 0:
        srd_from_ptr(k, 16, 8, S * D * 2)
    else:
        srd_from_ptr(k, 16, 10, 4 * MB, off=WS_X2)
    srd_from_ptr(k, 36, 10, 4 * MB, off=WS_X1)
    k(f"""
    s_lshl_b32 s27, s23, 2
    s_lshl_b32 s29, s25, 1
    s_add_u32 s27, s27, s29
    s_lshl_b32 s27, s27, 16
    s_lshl_b32 s29, s24, 7
    s_lshl_b32 s30, s26, 6
    s_add_u32 s29, s29, s30
    s_add_u32 s27, s27, s29
    s_add_u32 s28, s27, 65536
    v_and_b32 v6, 31, v{vlane}
    v_lshlrev_b32 v6, 11, v6
    v_lshrrev_b32 v7, 5, v{vlane}
    v_lshl_add_u32 v6, v7, 5, v6
    """)
    XR = 80
    for t in range(2):
        for hh in range(2):
            r = XR + 8 * t + 4 * hh
            k(f"buffer_load_dwordx4 v[{r}:{r + 3}], v6, s[16:19], s{27 + t} offen offset:{hh * 16}")
    k("s_nop 7")
    k("s_waitcnt vmcnt(0)")
    OR_ = 96
    for t, acc in enumerate((A0, A1)):
        for q in range(8):
            x = XR + 8 * t + q
            k(f"""
            v_cvt_pk_bf16_f32 v8, v{acc + 2 * q}, v{acc + 2 * q + 1}
            v_lshlrev_b32 v9, 16, v8
            v_and_b32 v8, 0xffff0000, v8
            v_lshlrev_b32 v10, 16, v{x}
            v_and_b32 v11, 0xffff0000, v{x}
            v_add_f32 v9, v9, v10
            v_add_f32 v8, v8, v11
            v_cvt_pk_bf16_f32 v{OR_ + 8 * t + q}, v9, v8
            """)
        for hh in range(2):
            r = OR_ + 8 * t + 4 * hh
            k(f"buffer_store_dwordx4 v[{r}:{r + 3}], v6, s[36:39], s{27 + t} offen offset:{hh * 16}")
    k(f"{EX}:")
    return k.text(vgpr=112, sgpr=56)


def gen_ln2(layer):
    k = K(f"ln2_{layer}_kernel")
    EX = k.label("exit")
    X, XN, WR, T = 16, 80, 144, 4
    k(f"""
    s_cmp_ge_u32 s2, 256
    s_cbranch_scc1 {EX}
    s_load_dwordx2 s[10:11], s[0:1], {KA_WS}
    s_load_dwordx2 s[8:9], s[0:1], {KA_WR}
    s_load_dwordx2 s[6:7], s[0:1], {KA_OUT}
    s_lshl_b32 s21, s2, 3
    v_lshrrev_b32 v2, 3, v0
    v_add_u32 v2, s21, v2
    v_lshlrev_b32 v2, 11, v2
    v_and_b32 v3, 7, v0
    v_lshlrev_b32 v3, 4, v3
    v_add_u32 v2, v2, v3
    s_waitcnt lgkmcnt(0)
    """)
    srd_from_ptr(k, 12, 10, 4 * MB, off=WS_X1)
    srd_from_ptr(k, 16, 8, D * 2)
    srd_from_ptr(k, 24, 10, 4 * MB, off=WS_XN2)
    srd_from_ptr(k, 28, 10, 8192, off=WS_R)
    if layer == 0:
        srd_from_ptr(k, 32, 10, 4 * MB, off=WS_X2)
        srd_from_ptr(k, 36, 10, 4 * MB, off=WS_XN_P)
    else:
        srd_from_ptr(k, 32, 6, S * D * 2)
    for it in range(16):
        k(f"buffer_load_dwordx4 v[{X + 4 * it}:{X + 4 * it + 3}], v2, s[12:15], 0 offen offset:{it * 128}")
    for it in range(16):
        k(f"buffer_load_dwordx4 v[{WR + 4 * it}:{WR + 4 * it + 3}], v3, s[16:19], 0 offen offset:{it * 128}")
    k("s_waitcnt vmcnt(16)")
    ln8(k, X, XN, T)
    for it in range(16):
        k(f"buffer_store_dwordx4 v[{XN + 4 * it}:{XN + 4 * it + 3}], v2, s[24:27], 0 offen offset:{it * 128}")
    k("s_waitcnt vmcnt(16)")
    a, b, c, d, s0, s1 = T, T + 1, T + 2, T + 3, T + 4, T + 5
    k(f"v_mov_b32 v{s0}, 0")
    k(f"v_mov_b32 v{s1}, 0")
    for p in range(64):
        k(f"""
        v_lshlrev_b32 v{a}, 16, v{XN + p}
        v_and_b32 v{b}, 0xffff0000, v{XN + p}
        v_lshlrev_b32 v{c}, 16, v{WR + p}
        v_and_b32 v{d}, 0xffff0000, v{WR + p}
        v_fmac_f32 v{s0}, v{a}, v{c}
        v_fmac_f32 v{s1}, v{b}, v{d}
        """)
    k(f"v_add_f32 v{s0}, v{s0}, v{s1}")
    reduce8_add(k, s0, None)
    k(f"""
    v_cvt_pk_bf16_f32 v{s0}, v{s0}, v{s0}
    v_and_b32 v{a}, 0xffff, v{s0}
    v_xor_b32 v{b}, 0xffff, v{a}
    v_or_b32 v{c}, 0x8000, v{a}
    v_cmp_lt_u32 vcc, 0x7fff, v{a}
    s_nop 1
    v_cndmask_b32 v{a}, v{c}, v{b}, vcc
    v_lshrrev_b32 v{b}, 3, v0
    v_add_u32 v{b}, s21, v{b}
    v_sub_u32 v{c}, 0xffff, v{b}
    v_lshl_or_b32 v{a}, v{a}, 16, v{c}
    v_lshlrev_b32 v{b}, 2, v{b}
    v_and_b32 v{c}, 7, v0
    v_cmp_eq_u32 vcc, 0, v{c}
    s_and_saveexec_b64 s[40:41], vcc
    buffer_store_dword v{a}, v{b}, s[28:31], 0 offen
    s_mov_b64 exec, s[40:41]
    """)
    for p in range(64):
        k(f"""
        v_lshlrev_b32 v{a}, 16, v{XN + p}
        v_and_b32 v{b}, 0xffff0000, v{XN + p}
        v_lshlrev_b32 v{c}, 16, v{X + p}
        v_and_b32 v{d}, 0xffff0000, v{X + p}
        v_add_f32 v{a}, v{a}, v{c}
        v_add_f32 v{b}, v{b}, v{d}
        v_cvt_pk_bf16_f32 v{X + p}, v{a}, v{b}
        """)
    for it in range(16):
        k(f"buffer_store_dwordx4 v[{X + 4 * it}:{X + 4 * it + 3}], v2, s[32:35], 0 offen offset:{it * 128}")
    if layer == 0:
        ln8(k, X, XN, T)
        store_xn_packed(k, XN, 36, 2, 0, 21, 22)
    k(f"{EX}:")
    return k.text(vgpr=208, sgpr=48)


def row16_max(k, v):
    for ctl in ("quad_perm:[1,0,3,2]", "quad_perm:[2,3,0,1]", "row_half_mirror", "row_mirror"):
        k("s_nop 1")
        k(f"v_max_u32_dpp v{v}, v{v}, v{v} {ctl} row_mask:0xf bank_mask:0xf")


def topk8(k, KEYS, T, SSEL, srd_r, lds_cand, lds_sel):
    m, cand, ad = T, T + 1, T + 2
    k(f"""
    s_lshl_b32 s60, s20, 11
    v_lshlrev_b32 v{ad}, 5, v0
    buffer_load_dwordx4 v[{KEYS}:{KEYS + 3}], v{ad}, s[{srd_r}:{srd_r + 3}], s60 offen
    buffer_load_dwordx4 v[{KEYS + 4}:{KEYS + 7}], v{ad}, s[{srd_r}:{srd_r + 3}], s60 offen offset:16
    v_mov_b32 v{cand}, 0
    s_waitcnt vmcnt(0)
    """)
    for rnd in range(8):
        k(f"v_max_u32 v{m}, v{KEYS}, v{KEYS + 1}")
        for j in range(2, 8):
            k(f"v_max_u32 v{m}, v{m}, v{KEYS + j}")
        row16_max(k, m)
        k(f"""
        s_nop 1
        v_readlane_b32 s60, v{m}, 0
        v_readlane_b32 s61, v{m}, 16
        v_readlane_b32 s62, v{m}, 32
        v_readlane_b32 s63, v{m}, 48
        s_max_u32 s60, s60, s61
        s_max_u32 s62, s62, s63
        s_max_u32 s60, s60, s62
        v_writelane_b32 v{cand}, s60, {rnd}
        """)
        for j in range(8):
            k(f"v_cmp_ne_u32 vcc, s60, v{KEYS + j}")
            k(f"s_nop 1")
            k(f"v_cndmask_b32 v{KEYS + j}, 0, v{KEYS + j}, vcc")
    k(f"""
    s_lshl_b32 s60, s20, 5
    v_lshlrev_b32 v{ad}, 2, v0
    v_add_u32 v{ad}, s60, v{ad}
    v_cmp_gt_u32 vcc, 8, v0
    s_and_saveexec_b64 s[62:63], vcc
    ds_write_b32 v{ad}, v{cand} offset:{lds_cand}
    s_mov_b64 exec, s[62:63]
    s_waitcnt lgkmcnt(0)
    s_barrier
    v_and_b32 v{ad}, 31, v0
    v_lshlrev_b32 v{ad}, 2, v{ad}
    ds_read_b32 v{cand}, v{ad} offset:{lds_cand}
    s_waitcnt lgkmcnt(0)
    """)
    for rnd in range(8):
        k(f"v_mov_b32 v{m}, v{cand}")
        row16_max(k, m)
        k(f"""
        s_nop 1
        v_readlane_b32 s60, v{m}, 0
        v_readlane_b32 s61, v{m}, 16
        s_max_u32 s{SSEL + rnd}, s60, s61
        v_cmp_ne_u32 vcc, s{SSEL + rnd}, v{cand}
        s_nop 1
        v_cndmask_b32 v{cand}, 0, v{cand}, vcc
        """)


def gen_ffn1():
    k = K("ffn1_kernel")
    EX = k.label("exit")
    WG_, WU_ = 64, 96
    ACC = 128
    XV = 160
    KEYS, T = 8, 4
    SSEL = 64
    LDS_CAND, LDS_SEL, LDS_XS, LDS_RED = 0, 128, 512, 8192
    k(f"""
    s_cmp_ge_u32 s2, 224
    s_cbranch_scc1 {EX}
    s_load_dwordx2 s[10:11], s[0:1], {KA_WS}
    s_load_dwordx2 s[4:5], s[0:1], {KA_WG}
    s_load_dwordx2 s[6:7], s[0:1], {KA_WU}
    v_lshrrev_b32 v1, 6, v0
    v_mov_b32 v3, v0
    v_and_b32 v0, 63, v0
    s_nop 0
    v_readfirstlane_b32 s20, v1
    s_mul_i32 s22, s2, 9363
    s_lshr_b32 s22, s22, 18
    s_mul_i32 s21, s22, 28
    s_sub_u32 s21, s2, s21
    s_waitcnt lgkmcnt(0)
    """)
    srd_from_ptr(k, 12, 4, D * F * 2)
    srd_from_ptr(k, 16, 6, D * F * 2)
    srd_from_ptr(k, 24, 10, 8192, off=WS_R)
    srd_from_ptr(k, 28, 10, 4 * MB, off=WS_XN2)
    srd_from_ptr(k, 32, 10, 2 * MB, off=WS_GU_P)
    srd_from_ptr(k, 36, 10, 32, off=WS_SEL)
    k(f"""
    s_lshl_b32 s23, s22, 7
    s_lshl_b32 s40, s20, 5
    s_add_u32 s23, s23, s40
    s_mul_i32 s23, s23, 7168
    s_lshl_b32 s40, s21, 8
    s_add_u32 s23, s23, s40
    v_lshlrev_b32 v2, 2, v0
    """)
    for i in range(32):
        k(f"buffer_load_dword v{WG_ + i}, v2, s[12:15], s23 offen")
        k(f"buffer_load_dword v{WU_ + i}, v2, s[16:19], s23 offen")
        k(f"s_add_u32 s23, s23, 7168")
    topk8(k, KEYS, T, SSEL, 24, LDS_CAND, LDS_SEL)
    k(f"v_mov_b32 v{T}, 0")
    for r in range(8):
        k(f"v_writelane_b32 v{T}, s{SSEL + r}, {r}")
    k(f"""
    v_lshlrev_b32 v{T + 1}, 2, v0
    s_lshl_b32 s40, s20, 5
    v_add_u32 v{T + 2}, s40, v{T + 1}
    v_cmp_gt_u32 vcc, 8, v0
    s_and_saveexec_b64 s[62:63], vcc
    ds_write_b32 v{T + 2}, v{T} offset:{LDS_SEL}
    s_or_b32 s41, s2, s20
    s_cmp_eq_u32 s41, 0
    s_cbranch_scc0 {k.name}_nosel
    buffer_store_dword v{T}, v{T + 1}, s[36:39], 0 offen
    {k.name}_nosel:
    s_mov_b64 exec, s[62:63]
    s_waitcnt lgkmcnt(0)
    v_lshrrev_b32 v{T + 1}, 5, v3
    v_lshlrev_b32 v{T + 1}, 2, v{T + 1}
    v_add_u32 v{T + 2}, s40, v{T + 1}
    ds_read_b32 v{T}, v{T + 2} offset:{LDS_SEL}
    s_waitcnt lgkmcnt(0)
    v_and_b32 v{T}, 0xffff, v{T}
    v_sub_u32 v{T}, 0xffff, v{T}
    v_lshlrev_b32 v{T}, 11, v{T}
    v_and_b32 v{T + 2}, 31, v3
    v_lshl_add_u32 v{T}, v{T + 2}, 3, v{T}
    s_lshl_b32 s40, s22, 8
    buffer_load_dwordx2 v[{KEYS}:{KEYS + 1}], v{T}, s[28:31], s40 offen
    v_lshl_add_u32 v{T + 1}, v{T + 2}, 7, v{T + 1}
    s_waitcnt vmcnt(0)
    v_lshlrev_b32 v{T}, 16, v{KEYS}
    v_and_b32 v{T + 2}, 0xffff0000, v{KEYS}
    ds_write_b32 v{T + 1}, v{T} offset:{LDS_XS}
    ds_write_b32 v{T + 1}, v{T + 2} offset:{LDS_XS + 32}
    v_lshlrev_b32 v{T}, 16, v{KEYS + 1}
    v_and_b32 v{T + 2}, 0xffff0000, v{KEYS + 1}
    ds_write_b32 v{T + 1}, v{T} offset:{LDS_XS + 64}
    ds_write_b32 v{T + 1}, v{T + 2} offset:{LDS_XS + 96}
    s_waitcnt lgkmcnt(0)
    s_barrier
    s_lshl_b32 s40, s20, 10
    v_mov_b32 v{T}, s40
    """)
    for i in range(32):
        k(f"v_mov_b32 v{ACC + i}, 0")
    for i in range(32):
        k(f"ds_read_b128 v[{XV}:{XV + 3}], v{T} offset:{LDS_XS + 32 * i}")
        k(f"ds_read_b128 v[{XV + 4}:{XV + 7}], v{T} offset:{LDS_XS + 32 * i + 16}")
        k(f"v_lshlrev_b32 v{T + 1}, 16, v{WG_ + i}")
        k(f"v_and_b32 v{T + 2}, 0xffff0000, v{WG_ + i}")
        k(f"v_lshlrev_b32 v{T + 3}, 16, v{WU_ + i}")
        k(f"v_and_b32 v{KEYS}, 0xffff0000, v{WU_ + i}")
        k("s_waitcnt lgkmcnt(0)")
        for t in range(8):
            k(f"v_fmac_f32 v{ACC + 2 * t}, v{XV + t}, v{T + 1}")
            k(f"v_fmac_f32 v{ACC + 2 * t + 1}, v{XV + t}, v{T + 2}")
            k(f"v_fmac_f32 v{ACC + 16 + 2 * t}, v{XV + t}, v{T + 3}")
            k(f"v_fmac_f32 v{ACC + 16 + 2 * t + 1}, v{XV + t}, v{KEYS}")
    k(f"""
    s_lshl_b32 s40, s20, 13
    v_lshlrev_b32 v{T}, 2, v0
    v_add_u32 v{T + 1}, s40, v{T}
    """)
    for a in range(32):
        k(f"ds_write_b32 v{T + 1}, v{ACC + a} offset:{LDS_RED + a * 256}")
    k(f"""
    s_waitcnt lgkmcnt(0)
    s_barrier
    s_lshl_b32 s40, s20, 11
    v_add_u32 v{T + 1}, s40, v{T}
    """)
    for a in range(8):
        for w in range(4):
            k(f"ds_read_b32 v{WG_ + 4 * a + w}, v{T + 1} offset:{LDS_RED + w * 8192 + a * 256}")
    k("s_waitcnt lgkmcnt(0)")
    for a in range(8):
        k(f"v_add_f32 v{ACC + a}, v{WG_ + 4 * a}, v{WG_ + 4 * a + 1}")
        k(f"v_add_f32 v{WG_ + 4 * a + 2}, v{WG_ + 4 * a + 2}, v{WG_ + 4 * a + 3}")
        k(f"v_add_f32 v{ACC + a}, v{ACC + a}, v{WG_ + 4 * a + 2}")
    k(f"""
    s_lshl_b32 s40, s22, 4
    s_lshl_b32 s41, s20, 2
    s_add_u32 s40, s40, s41
    s_mul_i32 s40, s40, {F * 4}
    s_lshl_b32 s41, s21, 9
    s_add_u32 s40, s40, s41
    v_lshlrev_b32 v{T}, 3, v0
    """)
    for q in range(4):
        k(f"buffer_store_dwordx2 v[{ACC + 2 * q}:{ACC + 2 * q + 1}], v{T}, s[32:35], s40 offen")
        k(f"s_add_u32 s40, s40, {F * 4}")
    k(f"{EX}:")
    return k.text(vgpr=176, sgpr=80)


def gen_ffn2():
    k = K("ffn2_kernel")
    EX = k.label("exit")
    WD_ = 64
    ACC = 128
    XV = 160
    T = 4
    LDS_XS, LDS_RED = 0, 8192
    k(f"""
    s_cmp_ge_u32 s2, 224
    s_cbranch_scc1 {EX}
    s_load_dwordx2 s[10:11], s[0:1], {KA_WS}
    s_load_dwordx2 s[4:5], s[0:1], {KA_WD}
    v_lshrrev_b32 v1, 6, v0
    v_mov_b32 v3, v0
    v_and_b32 v0, 63, v0
    s_nop 0
    v_readfirstlane_b32 s20, v1
    s_and_b32 s21, s2, 7
    s_lshr_b32 s22, s2, 3
    s_waitcnt lgkmcnt(0)
    """)
    srd_from_ptr(k, 12, 4, F * D * 2)
    srd_from_ptr(k, 32, 10, 2 * MB, off=WS_GU_P)
    srd_from_ptr(k, 36, 10, MB, off=WS_Y_P)
    k(f"""
    s_lshl_b32 s23, s22, 7
    s_lshl_b32 s40, s20, 5
    s_add_u32 s23, s23, s40
    s_lshl_b32 s23, s23, 11
    s_lshl_b32 s40, s21, 8
    s_add_u32 s23, s23, s40
    v_lshlrev_b32 v2, 2, v0
    """)
    for i in range(32):
        k(f"buffer_load_dword v{WD_ + i}, v2, s[12:15], s23 offen offset:{(i & 1) * 2048}")
        if i & 1:
            k(f"s_add_u32 s23, s23, 4096")
    k(f"""
    v_lshrrev_b32 v{T}, 5, v3
    v_mul_u32_u24 v{T + 1}, {F * 4}, v{T}
    v_and_b32 v{T + 2}, 31, v3
    v_lshl_add_u32 v{T + 1}, v{T + 2}, 4, v{T + 1}
    s_lshl_b32 s40, s22, 9
    """)
    P = 96
    for kc in range(8):
        for mat in range(2):
            r = P + 8 * kc + 4 * mat
            k(f"buffer_load_dwordx4 v[{r}:{r + 3}], v{T + 1}, s[32:35], s40 offen")
            k(f"s_add_u32 s40, s40, {8 * F * 4}")
    k("s_waitcnt vmcnt(0)")
    for j in range(8):
        for kc in range(1, 8):
            k(f"v_add_f32 v{P + j}, v{P + j}, v{P + 8 * kc + j}")
    k(f"""
    v_lshlrev_b32 v{T}, 2, v{T}
    v_lshl_add_u32 v{T}, v{T + 2}, 7, v{T}
    """)
    a, b, c, d = T + 1, T + 2, T + 3, XV
    for j in range(4):
        g, u = P + j, P + 4 + j
        k(f"""
        v_cvt_pk_bf16_f32 v{a}, v{g}, v{u}
        v_lshlrev_b32 v{g}, 16, v{a}
        v_and_b32 v{u}, 0xffff0000, v{a}
        v_mul_f32 v{a}, 0x{F32_LOG2E:x}, v{g}
        v_exp_f32 v{a}, -v{a}
        s_nop 0
        v_add_f32 v{a}, 1.0, v{a}
        v_rcp_f32 v{b}, v{a}
        s_nop 0
        v_mul_f32 v{c}, v{g}, v{b}
        v_fma_f32 v{d}, -v{c}, v{a}, v{g}
        v_fma_f32 v{c}, v{d}, v{b}, v{c}
        v_cvt_pk_bf16_f32 v{c}, v{c}, v{c}
        v_lshlrev_b32 v{c}, 16, v{c}
        v_mul_f32 v{c}, v{c}, v{u}
        v_cvt_pk_bf16_f32 v{c}, v{c}, v{c}
        v_lshlrev_b32 v{c}, 16, v{c}
        ds_write_b32 v{T}, v{c} offset:{LDS_XS + 32 * j}
        """)
    k(f"""
    s_waitcnt lgkmcnt(0)
    s_barrier
    s_lshl_b32 s40, s20, 10
    v_mov_b32 v{T}, s40
    """)
    for i in range(16):
        k(f"v_mov_b32 v{ACC + i}, 0")
    for i in range(32):
        k(f"ds_read_b128 v[{XV}:{XV + 3}], v{T} offset:{LDS_XS + 32 * i}")
        k(f"ds_read_b128 v[{XV + 4}:{XV + 7}], v{T} offset:{LDS_XS + 32 * i + 16}")
        k(f"v_lshlrev_b32 v{T + 1}, 16, v{WD_ + i}")
        k(f"v_and_b32 v{T + 2}, 0xffff0000, v{WD_ + i}")
        k("s_waitcnt lgkmcnt(0)")
        for t in range(8):
            k(f"v_fmac_f32 v{ACC + 2 * t}, v{XV + t}, v{T + 1}")
            k(f"v_fmac_f32 v{ACC + 2 * t + 1}, v{XV + t}, v{T + 2}")
    k(f"""
    s_lshl_b32 s40, s20, 12
    v_lshlrev_b32 v{T}, 2, v0
    v_add_u32 v{T + 1}, s40, v{T}
    """)
    for a_ in range(16):
        k(f"ds_write_b32 v{T + 1}, v{ACC + a_} offset:{LDS_RED + a_ * 256}")
    k(f"""
    s_waitcnt lgkmcnt(0)
    s_barrier
    s_lshl_b32 s40, s20, 10
    v_add_u32 v{T + 1}, s40, v{T}
    """)
    for a_ in range(4):
        for w in range(4):
            k(f"ds_read_b32 v{WD_ + 4 * a_ + w}, v{T + 1} offset:{LDS_RED + w * 4096 + a_ * 256}")
    k("s_waitcnt lgkmcnt(0)")
    for a_ in range(4):
        k(f"v_add_f32 v{ACC + a_}, v{WD_ + 4 * a_}, v{WD_ + 4 * a_ + 1}")
        k(f"v_add_f32 v{WD_ + 4 * a_ + 2}, v{WD_ + 4 * a_ + 2}, v{WD_ + 4 * a_ + 3}")
        k(f"v_add_f32 v{ACC + a_}, v{ACC + a_}, v{WD_ + 4 * a_ + 2}")
    k(f"""
    s_lshl_b32 s40, s22, 3
    s_lshl_b32 s41, s20, 1
    s_add_u32 s40, s40, s41
    s_lshl_b32 s40, s40, 12
    s_lshl_b32 s41, s21, 9
    s_add_u32 s40, s40, s41
    v_lshlrev_b32 v{T}, 3, v0
    buffer_store_dwordx2 v[{ACC}:{ACC + 1}], v{T}, s[36:39], s40 offen
    s_add_u32 s40, s40, 4096
    buffer_store_dwordx2 v[{ACC + 2}:{ACC + 3}], v{T}, s[36:39], s40 offen
    """)
    k(f"{EX}:")
    return k.text(vgpr=176, sgpr=80)


def gen_fix(layer):
    k = K(f"fix{layer}_kernel")
    EX = k.label("exit")
    P = 16
    k(f"""
    s_cmp_ge_u32 s2, 8
    s_cbranch_scc1 {EX}
    s_load_dwordx2 s[10:11], s[0:1], {KA_WS}
    s_load_dwordx2 s[6:7], s[0:1], {KA_OUT}
    s_waitcnt lgkmcnt(0)
    """)
    srd_from_ptr(k, 12, 10, MB, off=WS_Y_P)
    srd_from_ptr(k, 16, 10, 4 * MB, off=WS_XN2)
    srd_from_ptr(k, 24, 10, 4 * MB, off=WS_X1)
    if layer == 0:
        srd_from_ptr(k, 28, 10, 4 * MB, off=WS_X2)
        srd_from_ptr(k, 32, 10, 4 * MB, off=WS_XN_P)
    else:
        srd_from_ptr(k, 28, 6, S * D * 2)
    k(f"""
    s_add_u32 s36, s10, 0x{WS_SEL:x}
    s_addc_u32 s37, s11, 0
    s_lshl_b32 s21, s2, 2
    s_load_dword s22, s[36:37], s21
    v_lshlrev_b32 v1, 4, v0
    s_lshl_b32 s23, s2, 12
    """)
    for kc in range(28):
        k(f"buffer_load_dwordx4 v[{P + 4 * kc}:{P + 4 * kc + 3}], v1, s[12:15], s23 offen")
        k(f"s_add_u32 s23, s23, {8 * 4096}")
    k(f"""
    s_waitcnt lgkmcnt(0)
    s_and_b32 s38, s22, 0xffff
    """)
    k(f"""
    s_sub_u32 s38, 0xffff, s38
    s_lshl_b32 s39, s38, 11
    v_lshlrev_b32 v2, 3, v0
    buffer_load_dwordx2 v[4:5], v2, s[16:19], s39 offen
    buffer_load_dwordx2 v[6:7], v2, s[24:27], s39 offen
    s_lshr_b32 s40, s22, 16
    s_and_b32 s41, s40, 0x8000
    s_and_b32 s42, s40, 0x7fff
    s_xor_b32 s43, s40, 0xffff
    s_cmp_lg_u32 s41, 0
    s_cselect_b32 s40, s42, s43
    s_lshl_b32 s40, s40, 16
    v_mov_b32 v8, s40
    v_mul_f32 v9, 0x{F32_LOG2E:x}, v8
    v_exp_f32 v9, -v9
    s_nop 0
    v_add_f32 v9, 1.0, v9
    v_rcp_f32 v10, v9
    s_nop 0
    v_fma_f32 v11, -v10, v9, 1.0
    v_fma_f32 v10, v11, v10, v10
    v_cvt_pk_bf16_f32 v10, v10, v10
    v_lshlrev_b32 v10, 16, v10
    s_waitcnt vmcnt(0)
    """)
    for j in range(4):
        for kc in range(1, 28):
            k(f"v_add_f32 v{P + j}, v{P + j}, v{P + 4 * kc + j}")
    for j in range(4):
        xn = 4 + (j >> 1)
        x1 = 6 + (j >> 1)
        sh = (j & 1) == 0
        k(f"""
        v_cvt_pk_bf16_f32 v8, v{P + j}, v{P + j}
        v_lshlrev_b32 v8, 16, v8
        v_mul_f32 v8, v8, v10
        v_cvt_pk_bf16_f32 v8, v8, v8
        v_lshlrev_b32 v8, 16, v8
        """)
        if sh:
            k(f"v_lshlrev_b32 v9, 16, v{xn}")
            k(f"v_lshlrev_b32 v11, 16, v{x1}")
        else:
            k(f"v_and_b32 v9, 0xffff0000, v{xn}")
            k(f"v_and_b32 v11, 0xffff0000, v{x1}")
        k(f"""
        v_add_f32 v8, v8, v9
        v_cvt_pk_bf16_f32 v8, v8, v8
        v_lshlrev_b32 v8, 16, v8
        v_add_f32 v8, v8, v11
        v_cvt_pk_bf16_f32 v8, v8, v8
        v_lshlrev_b32 v{12 + j}, 16, v8
        """)
    k(f"""
    v_lshrrev_b32 v8, 16, v12
    v_or_b32 v4, v13, v8
    v_lshrrev_b32 v8, 16, v14
    v_or_b32 v5, v15, v8
    buffer_store_dwordx2 v[4:5], v2, s[28:31], s39 offen
    """)
    if layer == 0:
        def wg_sum(v, tmp, slot):
            for ctl in ("quad_perm:[1,0,3,2]", "quad_perm:[2,3,0,1]", "row_half_mirror", "row_mirror"):
                k("s_nop 1")
                k(f"v_add_f32_dpp v{v}, v{v}, v{v} {ctl} row_mask:0xf bank_mask:0xf")
            k(f"""
            s_nop 1
            v_readlane_b32 s44, v{v}, 0
            v_readlane_b32 s45, v{v}, 16
            v_readlane_b32 s46, v{v}, 32
            v_readlane_b32 s47, v{v}, 48
            v_mov_b32 v{v}, s44
            v_add_f32 v{v}, s45, v{v}
            v_add_f32 v{v}, s46, v{v}
            v_add_f32 v{v}, s47, v{v}
            v_lshrrev_b32 v{tmp}, 6, v0
            v_lshlrev_b32 v{tmp}, 2, v{tmp}
            ds_write_b32 v{tmp}, v{v} offset:{slot}
            s_waitcnt lgkmcnt(0)
            s_barrier
            v_mov_b32 v{tmp}, 0
            ds_read_b128 v[{P}:{P + 3}], v{tmp} offset:{slot}
            s_waitcnt lgkmcnt(0)
            v_add_f32 v{v}, v{P}, v{P + 1}
            v_add_f32 v{P + 2}, v{P + 2}, v{P + 3}
            v_add_f32 v{v}, v{v}, v{P + 2}
            """)
        k(f"""
        v_add_f32 v8, v12, v13
        v_add_f32 v9, v14, v15
        v_add_f32 v8, v8, v9
        """)
        wg_sum(8, 9, 0)
        k(f"""
        v_mul_f32 v8, 0x{F32_INV1024:x}, v8
        v_sub_f32 v9, v12, v8
        v_mul_f32 v10, v9, v9
        v_sub_f32 v9, v13, v8
        v_fmac_f32 v10, v9, v9
        v_sub_f32 v9, v14, v8
        v_fmac_f32 v10, v9, v9
        v_sub_f32 v9, v15, v8
        v_fmac_f32 v10, v9, v9
        """)
        wg_sum(10, 9, 16)
        k(f"""
        v_mul_f32 v10, 0x{F32_INV1024:x}, v10
        v_cvt_pk_bf16_f32 v9, v8, v10
        v_lshlrev_b32 v8, 16, v9
        v_and_b32 v10, 0xffff0000, v9
        v_add_f32 v10, 0x{F32_1EM5:x}, v10
        v_cvt_pk_bf16_f32 v10, v10, v10
        v_lshlrev_b32 v10, 16, v10
        v_sqrt_f32 v10, v10
        s_nop 0
        v_cvt_pk_bf16_f32 v10, v10, v10
        v_lshlrev_b32 v10, 16, v10
        v_rcp_f32 v11, v10
        s_nop 0
        """)
        for h2 in range(2):
            a0, a1 = 12 + 2 * h2, 13 + 2 * h2
            k(f"""
            v_sub_f32 v{a0}, v{a0}, v8
            v_sub_f32 v{a1}, v{a1}, v8
            v_cvt_pk_bf16_f32 v{a0}, v{a0}, v{a1}
            v_and_b32 v{a1}, 0xffff0000, v{a0}
            v_lshlrev_b32 v{a0}, 16, v{a0}
            """)
            div_bf16_pair(k, a0, a1, 10, 11, 4 + h2, P)
        k(f"""
        s_lshr_b32 s44, s38, 5
        s_lshl_b32 s44, s44, 16
        s_and_b32 s45, s38, 31
        s_lshl_b32 s45, s45, 4
        s_add_u32 s44, s44, s45
        v_lshrrev_b32 v8, 2, v0
        v_lshlrev_b32 v8, 10, v8
        v_bfe_u32 v9, v0, 1, 1
        v_lshl_add_u32 v8, v9, 9, v8
        v_and_b32 v9, 1, v0
        v_lshl_add_u32 v8, v9, 3, v8
        buffer_store_dwordx2 v[4:5], v8, s[32:35], s44 offen
        """)
    k(f"{EX}:")
    return k.text(vgpr=136, sgpr=56)


def build():
    parts = []
    launches = []
    parts.append(gen_prep())
    launches.append("; @launch kernel=prep_kernel grid=(320,1,1) block=(256,1,1) lds=0")
    parts.append(gen_qkv())
    parts.append(gen_ko())
    parts.append(gen_ffn1())
    parts.append(gen_ffn2())
    for layer in range(2):
        parts.append(gen_wo(layer))
        parts.append(gen_ln2(layer))
        parts.append(gen_fix(layer))
        launches.append(f"; @launch kernel=qkv_kernel grid=(256,1,1) block=(256,1,1) lds={3 * K1_STAGE}")
        launches.append(f"; @launch kernel=ko_kernel grid=(256,1,1) block=(256,1,1) lds=18432")
        launches.append(f"; @launch kernel=wo{layer}_kernel grid=(256,1,1) block=(256,1,1) lds={3 * K3_STAGE}")
        launches.append(f"; @launch kernel=ln2_{layer}_kernel grid=(256,1,1) block=(64,1,1) lds=0")
        launches.append(f"; @launch kernel=ffn1_kernel grid=(224,1,1) block=(256,1,1) lds=40960")
        launches.append(f"; @launch kernel=ffn2_kernel grid=(224,1,1) block=(256,1,1) lds=24576")
        launches.append(f"; @launch kernel=fix{layer}_kernel grid=(8,1,1) block=(256,1,1) lds=64")
    hdr = open("interleave_layers__linear_attn_block__moe_arch_mod__prompt.s.ref").read()
    hl = []
    for ln in hdr.split("\n"):
        if not ln.startswith(";"):
            break
        if "@launch" in ln:
            continue
        hl.append(ln)
    text = "\n".join(hl) + "\n" + "\n".join(launches) + "\n"
    text += '.amdgcn_target "amdgcn-amd-amdhsa--gfx950"\n'
    text += "\n".join(parts)
    return text


if __name__ == "__main__":
    out = sys.argv[1] if len(sys.argv) > 1 else "interleave_layers__linear_attn_block__moe_arch_mod__prompt.s"
    open(out, "w").write(build())
    print("wrote", out)
```

```python
import sys
sys.path.insert(0, "dev")
from asmlib import *
from layout import *

import os
EXP = os.environ.get("EXP", "")
F32_1EM5 = 0x3727C5AC
F32_1EM6 = 0x358637BD
F32_INV1024 = 0x3A800000
F32_LOG2E = 0x3FB8AA3B


def reduce8_add(k, v, t):
    k(f"s_nop 1")
    k(f"v_add_f32_dpp v{v}, v{v}, v{v} quad_perm:[1,0,3,2] row_mask:0xf bank_mask:0xf")
    k(f"s_nop 1")
    k(f"v_add_f32_dpp v{v}, v{v}, v{v} quad_perm:[2,3,0,1] row_mask:0xf bank_mask:0xf")
    k(f"s_nop 1")
    k(f"v_add_f32_dpp v{v}, v{v}, v{v} row_half_mirror row_mask:0xf bank_mask:0xf")


def ln8(k, X, OUT, T):
    lo, hi, s0, s1, mean, mb, sd, rs, q0, q1, e0, e1 = [T + i for i in range(12)]
    k(f"v_mov_b32 v{s0}, 0")
    k(f"v_mov_b32 v{s1}, 0")
    for p in range(64):
        k(f"v_lshlrev_b32 v{lo}, 16, v{X + p}")
        k(f"v_and_b32 v{hi}, 0xffff0000, v{X + p}")
        k(f"v_add_f32 v{s0}, v{s0}, v{lo}")
        k(f"v_add_f32 v{s1}, v{s1}, v{hi}")
    k(f"v_add_f32 v{s0}, v{s0}, v{s1}")
    reduce8_add(k, s0, None)
    k(f"v_mul_f32 v{mean}, 0x{F32_INV1024:x}, v{s0}")
    k(f"v_mov_b32 v{s0}, 0")
    k(f"v_mov_b32 v{s1}, 0")
    for p in range(64):
        k(f"v_lshlrev_b32 v{lo}, 16, v{X + p}")
        k(f"v_and_b32 v{hi}, 0xffff0000, v{X + p}")
        k(f"v_sub_f32 v{lo}, v{lo}, v{mean}")
        k(f"v_sub_f32 v{hi}, v{hi}, v{mean}")
        k(f"v_fmac_f32 v{s0}, v{lo}, v{lo}")
        k(f"v_fmac_f32 v{s1}, v{hi}, v{hi}")
    k(f"v_add_f32 v{s0}, v{s0}, v{s1}")
    reduce8_add(k, s0, None)
    k(f"v_mul_f32 v{s0}, 0x{F32_INV1024:x}, v{s0}")
    k(f"v_cvt_pk_bf16_f32 v{q0}, v{mean}, v{s0}")
    k(f"v_lshlrev_b32 v{mb}, 16, v{q0}")
    k(f"v_and_b32 v{s0}, 0xffff0000, v{q0}")
    k(f"v_add_f32 v{s0}, 0x{F32_1EM5:x}, v{s0}")
    k(f"v_cvt_pk_bf16_f32 v{s0}, v{s0}, v{s0}")
    k(f"v_lshlrev_b32 v{s0}, 16, v{s0}")
    k(f"v_sqrt_f32 v{s0}, v{s0}")
    k(f"s_nop 0")
    k(f"v_cvt_pk_bf16_f32 v{s0}, v{s0}, v{s0}")
    k(f"v_lshlrev_b32 v{sd}, 16, v{s0}")
    k(f"v_rcp_f32 v{rs}, v{sd}")
    k(f"s_nop 0")
    for p in range(64):
        k(f"v_lshlrev_b32 v{lo}, 16, v{X + p}")
        k(f"v_and_b32 v{hi}, 0xffff0000, v{X + p}")
        k(f"v_sub_f32 v{lo}, v{lo}, v{mb}")
        k(f"v_sub_f32 v{hi}, v{hi}, v{mb}")
        k(f"v_cvt_pk_bf16_f32 v{lo}, v{lo}, v{hi}")
        k(f"v_and_b32 v{hi}, 0xffff0000, v{lo}")
        k(f"v_lshlrev_b32 v{lo}, 16, v{lo}")
        k(f"v_mul_f32 v{q0}, v{lo}, v{rs}")
        k(f"v_mul_f32 v{q1}, v{hi}, v{rs}")
        k(f"v_fma_f32 v{e0}, -v{q0}, v{sd}, v{lo}")
        k(f"v_fma_f32 v{e1}, -v{q1}, v{sd}, v{hi}")
        k(f"v_fma_f32 v{q0}, v{e0}, v{rs}, v{q0}")
        k(f"v_fma_f32 v{q1}, v{e1}, v{rs}, v{q1}")
        k(f"v_cvt_pk_bf16_f32 v{OUT + p}, v{q0}, v{q1}")


def wave_sum(k, v, s0):
    for ctl in ("quad_perm:[1,0,3,2]", "quad_perm:[2,3,0,1]", "row_half_mirror", "row_mirror"):
        k("s_nop 1")
        k(f"v_add_f32_dpp v{v}, v{v}, v{v} {ctl} row_mask:0xf bank_mask:0xf")
    k(f"""
    s_nop 1
    v_readlane_b32 s{s0}, v{v}, 0
    v_readlane_b32 s{s0 + 1}, v{v}, 16
    v_readlane_b32 s{s0 + 2}, v{v}, 32
    v_readlane_b32 s{s0 + 3}, v{v}, 48
    s_nop 1
    v_mov_b32 v{v}, s{s0}
    v_add_f32 v{v}, s{s0 + 1}, v{v}
    v_add_f32 v{v}, s{s0 + 2}, v{v}
    v_add_f32 v{v}, s{s0 + 3}, v{v}
    """)


def unpack8(k, P, Fv):
    for q in range(8):
        k(f"v_lshlrev_b32 v{Fv + 2 * q}, 16, v{P + q}")
        k(f"v_and_b32 v{Fv + 2 * q + 1}, 0xffff0000, v{P + q}")


def ln_row(k, Fv, OUT, T, s0):
    a, b, mean, mb, sd, rs, q0, q1, e0, e1 = [T + i for i in range(10)]
    k(f"v_add_f32 v{a}, v{Fv}, v{Fv + 1}")
    k(f"v_add_f32 v{b}, v{Fv + 2}, v{Fv + 3}")
    for i in range(4, 16, 2):
        k(f"v_add_f32 v{a}, v{a}, v{Fv + i}")
        k(f"v_add_f32 v{b}, v{b}, v{Fv + i + 1}")
    k(f"v_add_f32 v{a}, v{a}, v{b}")
    wave_sum(k, a, s0)
    k(f"v_mul_f32 v{mean}, 0x{F32_INV1024:x}, v{a}")
    k(f"v_mov_b32 v{a}, 0")
    k(f"v_mov_b32 v{b}, 0")
    for i in range(0, 16, 2):
        k(f"v_sub_f32 v{q0}, v{Fv + i}, v{mean}")
        k(f"v_sub_f32 v{q1}, v{Fv + i + 1}, v{mean}")
        k(f"v_fmac_f32 v{a}, v{q0}, v{q0}")
        k(f"v_fmac_f32 v{b}, v{q1}, v{q1}")
    k(f"v_add_f32 v{a}, v{a}, v{b}")
    wave_sum(k, a, s0)
    k(f"""
    v_mul_f32 v{a}, 0x{F32_INV1024:x}, v{a}
    v_cvt_pk_bf16_f32 v{q0}, v{mean}, v{a}
    v_lshlrev_b32 v{mb}, 16, v{q0}
    v_and_b32 v{a}, 0xffff0000, v{q0}
    v_add_f32 v{a}, 0x{F32_1EM5:x}, v{a}
    v_cvt_pk_bf16_f32 v{a}, v{a}, v{a}
    v_lshlrev_b32 v{a}, 16, v{a}
    v_sqrt_f32 v{a}, v{a}
    s_nop 0
    v_cvt_pk_bf16_f32 v{a}, v{a}, v{a}
    v_lshlrev_b32 v{sd}, 16, v{a}
    v_rcp_f32 v{rs}, v{sd}
    s_nop 0
    """)
    for q in range(8):
        k(f"""
        v_sub_f32 v{a}, v{Fv + 2 * q}, v{mb}
        v_sub_f32 v{b}, v{Fv + 2 * q + 1}, v{mb}
        v_cvt_pk_bf16_f32 v{a}, v{a}, v{b}
        v_and_b32 v{b}, 0xffff0000, v{a}
        v_lshlrev_b32 v{a}, 16, v{a}
        v_mul_f32 v{q0}, v{a}, v{rs}
        v_mul_f32 v{q1}, v{b}, v{rs}
        v_fma_f32 v{e0}, -v{q0}, v{sd}, v{a}
        v_fma_f32 v{e1}, -v{q1}, v{sd}, v{b}
        v_fma_f32 v{q0}, v{e0}, v{rs}, v{q0}
        v_fma_f32 v{q1}, v{e1}, v{rs}, v{q1}
        v_cvt_pk_bf16_f32 v{OUT + q}, v{q0}, v{q1}
        """)


LNP_STRIDE = 2064


def store_rows_packed(k, P, srd, swave, srow0, vt, stmp):
    a, b, c = vt, vt + 1, vt + 2
    k(f"""
    s_mul_i32 s{stmp}, s{swave}, {LNP_STRIDE}
    v_lshlrev_b32 v{a}, 5, v0
    v_add_u32 v{a}, s{stmp}, v{a}
    ds_write_b128 v{a}, v[{P}:{P + 3}]
    ds_write_b128 v{a}, v[{P + 4}:{P + 7}] offset:16
    s_lshl_b32 s{stmp}, s{swave}, 6
    v_add_u32 v{a}, s{stmp}, v0
    v_and_b32 v{b}, 7, v{a}
    v_lshrrev_b32 v{a}, 3, v{a}
    v_mul_u32_u24 v{c}, {LNP_STRIDE}, v{b}
    v_lshl_add_u32 v{c}, v{a}, 4, v{c}
    s_waitcnt lgkmcnt(0)
    s_barrier
    ds_read_b128 v[{P}:{P + 3}], v{c}
    ds_read_b128 v[{P + 4}:{P + 7}], v{c} offset:1024
    s_and_b32 s{stmp}, s{srow0}, 31
    v_add_u32 v{b}, s{stmp}, v{b}
    v_lshlrev_b32 v{b}, 4, v{b}
    v_and_b32 v{c}, 1, v{a}
    v_lshl_add_u32 v{b}, v{c}, 9, v{b}
    v_lshrrev_b32 v{a}, 1, v{a}
    v_lshl_add_u32 v{b}, v{a}, 10, v{b}
    s_lshr_b32 s{stmp}, s{srow0}, 5
    s_lshl_b32 s{stmp}, s{stmp}, 16
    s_waitcnt lgkmcnt(0)
    buffer_store_dwordx4 v[{P}:{P + 3}], v{b}, s[{srd}:{srd + 3}], s{stmp} offen
    s_add_u32 s{stmp}, s{stmp}, 32768
    buffer_store_dwordx4 v[{P + 4}:{P + 7}], v{b}, s[{srd}:{srd + 3}], s{stmp} offen
    """)

def store_xn_packed(k, SRC, srd, vtmp, vlane, srow_base, stmp):
    a, b = vtmp, vtmp + 1
    k(f"v_lshrrev_b32 v{a}, 3, v{vlane}")
    k(f"v_add_u32 v{a}, s{srow_base}, v{a}")
    k(f"v_and_b32 v{b}, 31, v{a}")
    k(f"v_lshrrev_b32 v{a}, 5, v{a}")
    k(f"v_lshlrev_b32 v{a}, 16, v{a}")
    k(f"v_lshl_add_u32 v{a}, v{b}, 4, v{a}")
    k(f"v_and_b32 v{b}, 1, v{vlane}")
    k(f"v_lshl_add_u32 v{a}, v{b}, 9, v{a}")
    k(f"v_bfe_u32 v{b}, v{vlane}, 1, 2")
    k(f"v_lshl_add_u32 v{a}, v{b}, 10, v{a}")
    for it in range(16):
        k(f"s_mov_b32 s{stmp}, 0x{it * 4096:x}")
        k(f"buffer_store_dwordx4 v[{SRC + 4 * it}:{SRC + 4 * it + 3}], v{a}, s[{srd}:{srd + 3}], s{stmp} offen")


def gen_prep():
    k = K("prep_kernel")
    LN = k.label("ln")
    WO = k.label("wo")
    ST = k.label("st")
    EX = k.label("exit")
    k(f"""
    s_cmp_ge_u32 s2, 384
    s_cbranch_scc1 {EX}
    s_load_dwordx2 s[4:5], s[0:1], {KA_AX}
    s_load_dwordx2 s[6:7], s[0:1], {KA_WQKV}
    s_load_dwordx2 s[8:9], s[0:1], {KA_WO}
    s_load_dwordx2 s[10:11], s[0:1], {KA_WS}
    v_lshrrev_b32 v1, 6, v0
    v_and_b32 v0, 63, v0
    s_nop 0
    v_readfirstlane_b32 s20, v1
    s_waitcnt lgkmcnt(0)
    s_cmp_ge_u32 s2, 128
    s_cbranch_scc1 {LN}
    """)
    k(f"""
    s_lshl_b32 s21, s2, 3
    s_add_u32 s21, s21, s20
    s_lshl_b32 s21, s21, 3
    v_lshrrev_b32 v2, 5, v0
    v_and_b32 v3, 31, v0
    s_cmp_ge_u32 s21, 6144
    s_cbranch_scc1 {WO}
    """)
    srd_from_ptr(k, 12, 6, 1024 * 3072 * 2)
    k(f"""
    s_lshr_b32 s22, s21, 6
    s_and_b32 s23, s21, 63
    s_mul_i32 s23, s23, 98304
    s_lshl_b32 s22, s22, 6
    s_add_u32 s22, s22, s23
    s_mov_b32 s23, 98304
    v_mul_u32_u24 v4, 49152, v2
    v_lshl_add_u32 v4, v3, 1, v4
    """)
    for j in range(8):
        k(f"s_mov_b32 s{24 + j}, {j * 6144}")
    k(f"s_branch {ST}")
    k(f"{WO}:")
    srd_from_ptr(k, 12, 8, 1024 * 1024 * 2)
    k(f"""
    s_sub_u32 s22, s21, 6144
    s_and_b32 s23, s22, 63
    s_lshr_b32 s22, s22, 6
    s_lshl_b32 s23, s23, 15
    s_lshl_b32 s22, s22, 6
    s_add_u32 s22, s22, s23
    s_mov_b32 s23, 32768
    v_bfe_u32 v5, v3, 2, 1
    v_lshlrev_b32 v5, 4, v5
    v_and_b32 v6, 3, v3
    v_add_u32 v5, v5, v6
    v_lshrrev_b32 v6, 3, v3
    v_lshl_add_u32 v5, v6, 2, v5
    v_lshlrev_b32 v4, 13, v2
    v_lshl_add_u32 v4, v5, 1, v4
    """)
    for j in range(8):
        k(f"s_mov_b32 s{24 + j}, {(8 * (j >> 2) + (j & 3)) * 2048}")
    k(f"{ST}:")
    srd_from_ptr(k, 16, 10, WS_WQKV_P + 8 * MB, off=0)
    for i in range(8):
        k(f"v_add_u32 v5, s22, v4")
        for j in range(8):
            k(f"buffer_load_ushort v{16 + 8 * i + j}, v5, s[12:15], s{24 + j} offen")
        k(f"s_add_u32 s22, s22, s23")
    k(f"""
    s_lshl_b32 s21, s21, 10
    v_lshlrev_b32 v6, 4, v0
    """)
    for i in range(8):
        k(f"s_waitcnt vmcnt({8 * (7 - i)})")
        for q in range(4):
            k(f"v_lshl_or_b32 v{80 + 4 * i + q}, v{16 + 8 * i + 2 * q + 1}, 16, v{16 + 8 * i + 2 * q}")
        k(f"buffer_store_dwordx4 v[{80 + 4 * i}:{83 + 4 * i}], v6, s[16:19], s21 offen")
        k(f"s_add_u32 s21, s21, 1024")
    k(f"s_branch {EX}")
    k(f"{LN}:")
    srd_from_ptr(k, 12, 4, S * D * 2)
    srd_from_ptr(k, 16, 10, 4 * MB, off=WS_XN_P)
    k(f"""
    s_sub_u32 s21, s2, 128
    s_lshl_b32 s21, s21, 3
    s_add_u32 s22, s21, s20
    s_lshl_b32 s23, s22, 11
    v_lshlrev_b32 v2, 5, v0
    buffer_load_dwordx4 v[8:11], v2, s[12:15], s23 offen
    buffer_load_dwordx4 v[12:15], v2, s[12:15], s23 offen offset:16
    s_waitcnt vmcnt(0)
    """)
    unpack8(k, 8, 32)
    ln_row(k, 32, 24, 48, 40)
    store_rows_packed(k, 24, 16, 20, 21, 3, 44)
    k(f"{EX}:")
    return k.text(vgpr=144, sgpr=56)


def phi_pair(k, a0, a1, dst, T, zsum=None):
    t0, t1, e0, e1, p0, p1 = [T + i for i in range(6)]
    k(f"""
    v_cvt_pk_bf16_f32 v{e0}, v{a0}, v{a1}
    v_lshlrev_b32 v{t0}, 16, v{e0}
    v_and_b32 v{t1}, 0xffff0000, v{e0}
    v_mul_f32 v{e0}, 0x{F32_LOG2E:x}, v{t0}
    v_mul_f32 v{e1}, 0x{F32_LOG2E:x}, v{t1}
    v_exp_f32 v{e0}, v{e0}
    v_exp_f32 v{e1}, v{e1}
    v_add_f32 v{p0}, 1.0, v{t0}
    v_add_f32 v{p1}, 1.0, v{t1}
    v_cmp_lt_f32 vcc, 0, v{t0}
    s_nop 1
    v_cndmask_b32 v{e0}, v{e0}, v{p0}, vcc
    v_cmp_lt_f32 vcc, 0, v{t1}
    s_nop 1
    v_cndmask_b32 v{e1}, v{e1}, v{p1}, vcc
    v_cvt_pk_bf16_f32 v{e0}, v{e0}, v{e1}
    v_lshlrev_b32 v{t0}, 16, v{e0}
    v_and_b32 v{t1}, 0xffff0000, v{e0}
    v_add_f32 v{t0}, 0x{F32_1EM6:x}, v{t0}
    v_add_f32 v{t1}, 0x{F32_1EM6:x}, v{t1}
    v_cvt_pk_bf16_f32 v{dst}, v{t0}, v{t1}
    """)
    if zsum is not None:
        k(f"""
        v_lshlrev_b32 v{t0}, 16, v{dst}
        v_and_b32 v{t1}, 0xffff0000, v{dst}
        v_add_f32 v{zsum}, v{zsum}, v{t0}
        v_add_f32 v{zsum}, v{zsum}, v{t1}
        """)


def gemm_main(k, NT, NS, STAGE, reads, mfma_list, nread, TOFF, vwoff, vrdA, vrdB, vrdAc, vrdBc):
    LOOP = k.label("loop")
    nm = len(mfma_list(0))

    def dma_one(t):
        return [f"s_add_u32 m0, s34, 0x{t * 4096:x}",
                f"s_add_u32 s{TOFF + t}, s{TOFF + t}, 4096",
                f"buffer_load_dwordx4 v{vwoff}, s[12:15], s{TOFF + t} offen lds"]

    def iteration(X, Y, dma, vm, last):
        sets = [X, Y, X, Y]
        dq = [dma_one(t) for t in range(NT)] if (dma and "nodma" not in EXP) else []
        for st in range(4):
            cur, nxt = sets[st], sets[(st + 1) % 4]
            mf = mfma_list(cur)
            rd = reads(nxt, (st + 1) % 4) if not (last and st == 3) else []
            k("s_waitcnt lgkmcnt(0)")
            gaps = [[] for _ in range(nm)]
            if st == 3 and not last:
                gaps[0] += ([] if "nobar" in EXP else [f"s_waitcnt vmcnt({vm})", "s_barrier"]) + [
                            f"s_add_u32 s33, s33, {STAGE}",
                            f"s_cmp_eq_u32 s33, {NS * STAGE}",
                            f"s_cselect_b32 s33, 0, s33",
                            f"v_add_u32 v{vrdAc}, s33, v{vrdA}",
                            f"v_add_u32 v{vrdBc}, s33, v{vrdB}"]
            for i, r in enumerate(rd):
                gaps[min(i // 2, nm - 1)].append(r)
            per = (len(dq) + 3 - st) // (4 - st) if dq else 0
            for j in range(per):
                g = nm - 1 - (j % max(1, nm - (nread + 1) // 2))
                gaps[g] += dq.pop(0)
            for m in range(nm):
                k(mf[m])
                for ins in gaps[m]:
                    k(ins)
        if dma:
            k(f"s_add_u32 s34, s34, {STAGE}")
            k(f"s_cmp_ge_u32 s34, {NS * STAGE}")
            k(f"s_cselect_b32 s35, {NS * STAGE}, 0")
            k(f"s_sub_u32 s34, s34, s35")

    return LOOP, iteration

K1_STAGE = 40960
K1_NS = int(os.environ.get("K1NS", "4"))


def gen_qkv():
    k = K("qkv_kernel")
    EX = k.label("exit")
    LOOP = k.label("loop")
    X, Y = 16, 36
    ACC = 64
    Q0, Q1, K0, K1_, V0, V1 = [ACC + 16 * i for i in range(6)]
    vlane, vwoff, vrdA, vrdB, vrdAc, vrdBc = 0, 1, 2, 3, 4, 5
    TOFF = 40
    k(f"""
    s_cmp_ge_u32 s2, 256
    s_cbranch_scc1 {EX}
    s_load_dwordx2 s[10:11], s[0:1], {KA_WS}
    v_lshrrev_b32 v1, 6, v0
    v_and_b32 v0, 63, v0
    s_nop 0
    v_readfirstlane_b32 s20, v1
    s_and_b32 s21, s2, 7
    s_lshr_b32 s22, s2, 3
    s_and_b32 s23, s21, 1
    s_lshl_b32 s23, s23, 3
    s_and_b32 s24, s22, 7
    s_add_u32 s23, s23, s24
    s_lshr_b32 s24, s21, 1
    s_lshl_b32 s24, s24, 2
    s_lshr_b32 s25, s22, 3
    s_add_u32 s24, s24, s25
    s_lshr_b32 s25, s20, 1
    s_and_b32 s26, s20, 1
    s_waitcnt lgkmcnt(0)
    """)
    if "stamp" in EXP:
        k("s_memtime s[70:71]")
        k("s_memrealtime s[76:77]")
    srd_from_ptr(k, 12, 10, 0x1400000)
    k(f"s_lshl_b32 s27, s23, 18")
    for t in range(4):
        k(f"s_add_u32 s{TOFF + t}, s27, 0x{WS_XN_P + t * 65536:x}")
    k(f"s_lshl_b32 s27, s24, 17")
    for u in range(6):
        k(f"s_add_u32 s{TOFF + 4 + u}, s27, 0x{WS_WQKV_P + ((u >> 1) * 32 + (u & 1)) * 65536:x}")
    k(f"""
    s_lshl_b32 s28, s20, 10
    v_lshlrev_b32 v{vwoff}, 4, v{vlane}
    v_add_u32 v{vwoff}, s28, v{vwoff}
    v_lshlrev_b32 v{vrdA}, 4, v{vlane}
    s_lshl_b32 s29, s25, 13
    v_add_u32 v{vrdA}, s29, v{vrdA}
    s_lshl_b32 s29, s26, 12
    s_add_u32 s29, s29, 16384
    v_lshlrev_b32 v{vrdB}, 4, v{vlane}
    v_add_u32 v{vrdB}, s29, v{vrdB}
    """)

    def reads(dst, s):
        if "nolds" in EXP:
            return []
        return [f"ds_read_b128 v[{dst}:{dst + 3}], v{vrdAc} offset:{s * 1024}",
                f"ds_read_b128 v[{dst + 4}:{dst + 7}], v{vrdAc} offset:{4096 + s * 1024}",
                f"ds_read_b128 v[{dst + 8}:{dst + 11}], v{vrdBc} offset:{s * 1024}",
                f"ds_read_b128 v[{dst + 12}:{dst + 15}], v{vrdBc} offset:{8192 + s * 1024}",
                f"ds_read_b128 v[{dst + 16}:{dst + 19}], v{vrdBc} offset:{16384 + s * 1024}"]

    def mfma_list(f):
        a0, a1, bq, bk, bv = f, f + 4, f + 8, f + 12, f + 16
        out = []
        for (acc, A, B) in ((Q0, bq, a0), (K0, a0, bk), (V0, a0, bv), (Q1, bq, a1), (K1_, a1, bk), (V1, a1, bv)):
            out.append(f"v_mfma_f32_32x32x16_bf16 v[{acc}:{acc + 15}], v[{A}:{A + 3}], v[{B}:{B + 3}], v[{acc}:{acc + 15}]")
        return out

    NS = K1_NS
    LOOP, iteration = gemm_main(k, 10, NS, K1_STAGE, reads, mfma_list, 5, TOFF, vwoff, vrdA, vrdB, vrdAc, vrdBc)
    for t in range(10):
        k(f"s_sub_u32 s{TOFF + t}, s{TOFF + t}, 4096")
    k("s_mov_b32 s34, s28")
    for st in range(NS - 1):
        for t in range(10):
            for ins in [f"s_add_u32 m0, s34, 0x{t * 4096:x}",
                        f"s_add_u32 s{TOFF + t}, s{TOFF + t}, 4096",
                        f"buffer_load_dwordx4 v{vwoff}, s[12:15], s{TOFF + t} offen lds"]:
                k(ins)
        k(f"s_add_u32 s34, s34, {K1_STAGE}")
    for i in range(96):
        k(f"v_mov_b32 v{ACC + i}, 0")
    k(f"""
    s_mov_b32 s32, 0
    s_mov_b32 s33, 0
    s_waitcnt vmcnt({10 * (NS - 2)})
    s_barrier
    v_add_u32 v{vrdAc}, s33, v{vrdA}
    v_add_u32 v{vrdBc}, s33, v{vrdB}
    """)
    for r in reads(X, 0):
        k(r)
    nmain = 16 - (NS - 1)
    k(f"{LOOP}:")
    iteration(X, Y, True, 10 * (NS - 3) + 8, False)
    k(f"""
    s_add_u32 s32, s32, 1
    s_cmp_lt_u32 s32, {nmain}
    s_cbranch_scc1 {LOOP}
    """)
    for kt in range(nmain, 16):
        iteration(X, Y, False, 10 * (15 - kt - 1), kt == 15)
    k("s_nop 15")
    k("s_nop 15")
    if "stamp" in EXP:
        k("s_memtime s[72:73]")
    T = 8
    PK = 160
    PV = 176
    PQ = 192
    ZS = 200
    KVA = 208
    k(f"v_mov_b32 v{ZS}, 0")
    srd_from_ptr(k, 16, 10, 4 * MB, off=WS_PQ_P)
    k(f"""
    s_lshl_b32 s27, s23, 2
    s_lshl_b32 s29, s25, 1
    s_add_u32 s27, s27, s29
    s_lshl_b32 s27, s27, 16
    s_lshl_b32 s29, s24, 1
    s_add_u32 s29, s29, s26
    s_lshl_b32 s30, s29, 11
    s_add_u32 s27, s27, s30
    v_lshlrev_b32 v6, 4, v{vlane}
    """)
    for t, acc in enumerate((Q0, Q1)):
        for q in range(8):
            phi_pair(k, acc + 2 * q, acc + 2 * q + 1, PQ + q, T)
        k(f"buffer_store_dwordx4 v[{PQ}:{PQ + 3}], v6, s[16:19], s27 offen")
        k(f"buffer_store_dwordx4 v[{PQ + 4}:{PQ + 7}], v6, s[16:19], s27 offen offset:1024")
        if t == 0:
            k("s_nop 1")
            k(f"s_add_u32 s27, s27, 65536")
    for t, acc in enumerate((K0, K1_)):
        for q in range(8):
            phi_pair(k, acc + 2 * q, acc + 2 * q + 1, PK + 8 * t + q, T, zsum=ZS)
    for t, acc in enumerate((V0, V1)):
        for q in range(8):
            k(f"v_cvt_pk_bf16_f32 v{PV + 8 * t + q}, v{acc + 2 * q}, v{acc + 2 * q + 1}")
    k("s_nop 1")
    first = True
    for t in range(2):
        for c in range(2):
            a = PK + 8 * t + 4 * c
            b = PV + 8 * t + 4 * c
            cc = "0" if first else f"v[{KVA}:{KVA + 15}]"
            k(f"v_mfma_f32_32x32x16_bf16 v[{KVA}:{KVA + 15}], v[{a}:{a + 3}], v[{b}:{b + 3}], {cc}")
            first = False
    k(f"""
    v_mov_b32 v{ZS + 1}, v{ZS}
    s_nop 1
    v_permlane32_swap_b32 v{ZS}, v{ZS + 1}
    v_add_f32 v{ZS}, v{ZS}, v{ZS + 1}
    s_nop 15
    s_barrier
    """)
    RD = k.label("rd")
    k(f"""
    s_lshl_b32 s27, s26, 13
    v_lshlrev_b32 v7, 2, v{vlane}
    v_add_u32 v7, s27, v7
    v_add_u32 v6, s27, v6
    s_cmp_eq_u32 s25, 0
    s_cbranch_scc1 {RD}
    """)
    for iq in range(4):
        k(f"ds_write_b128 v6, v[{KVA + 4 * iq}:{KVA + 4 * iq + 3}] offset:{iq * 1024}")
    k(f"""
    ds_write_b32 v7, v{ZS} offset:4096
    s_waitcnt lgkmcnt(0)
    s_barrier
    s_branch {EX}
    {RD}:
    s_barrier
    """)
    for iq in range(4):
        k(f"ds_read_b128 v[{PK + 4 * iq}:{PK + 4 * iq + 3}], v6 offset:{iq * 1024}")
    k(f"ds_read_b32 v{ZS + 1}, v7 offset:4096")
    srd_from_ptr(k, 16, 10, 2 * MB, off=WS_KVP)
    srd_from_ptr(k, 36, 10, 64 * 1024, off=WS_ZP)
    k(f"""
    s_lshl_b32 s27, s23, 5
    s_add_u32 s27, s27, s29
    s_lshl_b32 s30, s27, 7
    s_lshl_b32 s27, s27, 12
    v_lshlrev_b32 v6, 4, v{vlane}
    v_lshlrev_b32 v7, 2, v{vlane}
    s_waitcnt lgkmcnt(0)
    """)
    for i in range(16):
        k(f"v_add_f32 v{KVA + i}, v{KVA + i}, v{PK + i}")
    k(f"v_add_f32 v{ZS}, v{ZS}, v{ZS + 1}")
    for iq in range(4):
        k(f"buffer_store_dwordx4 v[{KVA + 4 * iq}:{KVA + 4 * iq + 3}], v6, s[16:19], s27 offen offset:{iq * 1024}")
    k(f"""
    v_cmp_gt_u32 vcc, 32, v{vlane}
    s_and_saveexec_b64 s[34:35], vcc
    buffer_store_dword v{ZS}, v7, s[36:39], s30 offen
    """)
    if "stamp" in EXP:
        k(f"""
        s_mov_b64 exec, -1
        s_memtime s[74:75]
        s_memrealtime s[78:79]
        s_load_dwordx2 s[80:81], s[0:1], {KA_DBG}
        s_waitcnt lgkmcnt(0)
        s_cmp_lg_u32 s2, 0
        s_cbranch_scc1 {EX}
        """)
        srd_from_ptr(k, 84, 80, 256)
        for i in range(10):
            k(f"v_mov_b32 v{8 + i}, s{70 + i}")
        k("""
        v_mov_b32 v6, 0
        buffer_store_dwordx4 v[8:11], v6, s[84:87], 0 offen
        buffer_store_dwordx4 v[12:15], v6, s[84:87], 0 offen offset:16
        buffer_store_dwordx2 v[16:17], v6, s[84:87], 0 offen offset:32
        """)
    k(f"{EX}:")
    return k.text(vgpr=224, sgpr=96)


def div_bf16_pair(k, n0, n1, den, rden, dst, T):
    q0, q1, e0, e1 = T, T + 1, T + 2, T + 3
    k(f"""
    v_mul_f32 v{q0}, v{n0}, v{rden}
    v_mul_f32 v{q1}, v{n1}, v{rden}
    v_fma_f32 v{e0}, -v{q0}, v{den}, v{n0}
    v_fma_f32 v{e1}, -v{q1}, v{den}, v{n1}
    v_fma_f32 v{q0}, v{e0}, v{rden}, v{q0}
    v_fma_f32 v{q1}, v{e1}, v{rden}, v{q1}
    v_cvt_pk_bf16_f32 v{dst}, v{q0}, v{q1}
    """)


def gen_ko():
    k = K("ko_kernel")
    EX = k.label("exit")
    k(f"""
    s_cmp_ge_u32 s2, 256
    s_cbranch_scc1 {EX}
    s_load_dwordx2 s[10:11], s[0:1], {KA_WS}
    v_lshrrev_b32 v1, 6, v0
    v_and_b32 v0, 63, v0
    s_nop 0
    v_readfirstlane_b32 s20, v1
    s_and_b32 s21, s2, 31
    s_lshr_b32 s22, s2, 5
    v_lshlrev_b32 v2, 4, v0
    v_and_b32 v3, 31, v0
    v_lshlrev_b32 v3, 2, v3
    s_waitcnt lgkmcnt(0)
    """)
    srd_from_ptr(k, 12, 10, 2 * MB, off=WS_KVP)
    srd_from_ptr(k, 16, 10, 64 * 1024, off=WS_ZP)
    srd_from_ptr(k, 24, 10, 4 * MB, off=WS_PQ_P)
    srd_from_ptr(k, 28, 10, 4 * MB, off=WS_O_P)
    k(f"""
    s_lshl_b32 s23, s20, 2
    s_lshl_b32 s23, s23, 5
    s_add_u32 s23, s23, s21
    s_lshl_b32 s32, s23, 7
    s_lshl_b32 s23, s23, 12
    """)
    for r in range(4):
        for iq in range(4):
            k(f"buffer_load_dwordx4 v[{16 + 16 * r + 4 * iq}:{19 + 16 * r + 4 * iq}], v2, s[12:15], s23 offen offset:{iq * 1024}")
        k(f"buffer_load_dword v{96 + r}, v3, s[16:19], s32 offen")
        k(f"s_add_u32 s23, s23, {32 * 4096}")
        k(f"s_add_u32 s32, s32, {32 * 128}")
    PQF = 104
    k(f"""
    s_lshl_b32 s33, s22, 3
    s_lshl_b32 s34, s20, 1
    s_add_u32 s33, s33, s34
    s_lshl_b32 s33, s33, 16
    s_lshl_b32 s34, s21, 11
    s_add_u32 s33, s33, s34
    s_add_u32 s34, s33, 65536
    """)
    for t in range(2):
        for blk in range(2):
            r = PQF + 8 * t + 4 * blk
            k(f"buffer_load_dwordx4 v[{r}:{r + 3}], v2, s[24:27], s{33 + t} offen offset:{blk * 1024}")
    k("s_waitcnt vmcnt(4)")
    for i in range(16):
        k(f"v_add_f32 v{16 + i}, v{16 + i}, v{32 + i}")
        k(f"v_add_f32 v{48 + i}, v{48 + i}, v{64 + i}")
        k(f"v_add_f32 v{16 + i}, v{16 + i}, v{48 + i}")
    k(f"""
    v_add_f32 v96, v96, v97
    v_add_f32 v98, v98, v99
    v_add_f32 v96, v96, v98
    s_lshl_b32 s35, s20, 12
    v_add_u32 v4, s35, v2
    s_lshl_b32 s35, s20, 7
    v_add_u32 v5, s35, v3
    """)
    for iq in range(4):
        k(f"ds_write_b128 v4, v[{16 + 4 * iq}:{19 + 4 * iq}] offset:{iq * 1024}")
    k(f"""
    ds_write_b32 v5, v96 offset:16384
    s_waitcnt lgkmcnt(0)
    s_barrier
    """)
    for w in range(4):
        for iq in range(4):
            k(f"ds_read_b128 v[{16 + 16 * w + 4 * iq}:{19 + 16 * w + 4 * iq}], v2 offset:{w * 4096 + iq * 1024}")
        k(f"ds_read_b32 v{96 + w}, v3 offset:{16384 + w * 128}")
    k("s_waitcnt lgkmcnt(0)")
    KVA, ZA = 80, 88
    for i in range(16):
        k(f"v_add_f32 v{16 + i}, v{16 + i}, v{32 + i}")
        k(f"v_add_f32 v{48 + i}, v{48 + i}, v{64 + i}")
        k(f"v_add_f32 v{16 + i}, v{16 + i}, v{48 + i}")
    for q in range(8):
        k(f"v_cvt_pk_bf16_f32 v{KVA + q}, v{16 + 2 * q}, v{17 + 2 * q}")
    k(f"""
    v_add_f32 v96, v96, v97
    v_add_f32 v98, v98, v99
    v_add_f32 v96, v96, v98
    v_cvt_pk_bf16_f32 v96, v96, v96
    v_lshlrev_b32 v96, 16, v96
    ds_write_b32 v5, v96 offset:17408
    v_lshrrev_b32 v6, 5, v0
    v_lshlrev_b32 v6, 4, v6
    s_lshl_b32 s35, s20, 7
    v_add_u32 v6, s35, v6
    s_waitcnt lgkmcnt(0)
    """)
    for blk in range(2):
        for jq in range(2):
            r = 16 + 8 * blk + 4 * jq
            k(f"ds_read_b128 v[{r}:{r + 3}], v6 offset:{17408 + (16 * blk + 8 * jq) * 4}")
    k("s_waitcnt lgkmcnt(0)")
    for blk in range(2):
        for q in range(4):
            k(f"v_cvt_pk_bf16_f32 v{ZA + 4 * blk + q}, v{16 + 8 * blk + 2 * q}, v{17 + 8 * blk + 2 * q}")
    k("s_waitcnt vmcnt(0)")
    k("s_nop 1")
    NUM, DEN = 16, 48
    for t in range(2):
        num, den = NUM + 16 * t, DEN + 16 * t
        for blk in range(2):
            p = PQF + 8 * t + 4 * blk
            c = "0" if blk == 0 else f"v[{num}:{num + 15}]"
            k(f"v_mfma_f32_32x32x16_bf16 v[{num}:{num + 15}], v[{KVA + 4 * blk}:{KVA + 4 * blk + 3}], v[{p}:{p + 3}], {c}")
            c = "0" if blk == 0 else f"v[{den}:{den + 15}]"
            k(f"v_mfma_f32_32x32x16_bf16 v[{den}:{den + 15}], v[{ZA + 4 * blk}:{ZA + 4 * blk + 3}], v[{p}:{p + 3}], {c}")
    k("s_nop 15")
    T = 8
    OUTR = 120
    for t in range(2):
        num, den = NUM + 16 * t, DEN + 16 * t
        k(f"""
        v_cvt_pk_bf16_f32 v{T}, v{den}, v{den}
        v_lshlrev_b32 v{T}, 16, v{T}
        v_add_f32 v{T}, 0x{F32_1EM6:x}, v{T}
        v_cvt_pk_bf16_f32 v{T}, v{T}, v{T}
        v_lshlrev_b32 v{T}, 16, v{T}
        v_rcp_f32 v{T + 1}, v{T}
        s_nop 0
        """)
        for q in range(8):
            k(f"""
            v_cvt_pk_bf16_f32 v{T + 2}, v{num + 2 * q}, v{num + 2 * q + 1}
            v_and_b32 v{T + 3}, 0xffff0000, v{T + 2}
            v_lshlrev_b32 v{T + 2}, 16, v{T + 2}
            """)
            div_bf16_pair(k, T + 2, T + 3, T, T + 1, OUTR + 8 * t + q, T + 4)
        for blk in range(2):
            r = OUTR + 8 * t + 4 * blk
            k(f"buffer_store_dwordx4 v[{r}:{r + 3}], v2, s[28:31], s{33 + t} offen offset:{blk * 1024}")
    k(f"{EX}:")
    return k.text(vgpr=136, sgpr=40)


K3_STAGE = 24576
K3_NS = 4


def gen_wo(layer):
    k = K(f"wo{layer}_kernel")
    EX = k.label("exit")
    LOOP = k.label("loop")
    X, Y = 16, 28
    ACC = 48
    A0, A1 = ACC, ACC + 16
    vlane, vwoff, vrdA, vrdB, vrdAc, vrdBc = 0, 1, 2, 3, 4, 5
    TOFF = 40
    k(f"""
    s_cmp_ge_u32 s2, 256
    s_cbranch_scc1 {EX}
    s_load_dwordx2 s[10:11], s[0:1], {KA_WS}
    s_load_dwordx2 s[8:9], s[0:1], {KA_AX}
    v_lshrrev_b32 v1, 6, v0
    v_and_b32 v0, 63, v0
    s_nop 0
    v_readfirstlane_b32 s20, v1
    s_and_b32 s21, s2, 7
    s_lshr_b32 s22, s2, 3
    s_and_b32 s23, s21, 1
    s_lshl_b32 s23, s23, 3
    s_and_b32 s24, s22, 7
    s_add_u32 s23, s23, s24
    s_lshr_b32 s24, s21, 1
    s_lshl_b32 s24, s24, 2
    s_lshr_b32 s25, s22, 3
    s_add_u32 s24, s24, s25
    s_lshr_b32 s25, s20, 1
    s_and_b32 s26, s20, 1
    s_waitcnt lgkmcnt(0)
    """)
    srd_from_ptr(k, 12, 10, 0x1400000)
    k(f"s_lshl_b32 s27, s23, 18")
    for t in range(4):
        k(f"s_add_u32 s{TOFF + t}, s27, 0x{WS_O_P + t * 65536:x}")
    k(f"s_lshl_b32 s27, s24, 17")
    for u in range(2):
        k(f"s_add_u32 s{TOFF + 4 + u}, s27, 0x{WS_WO_P + u * 65536:x}")
    k(f"""
    s_lshl_b32 s28, s20, 10
    v_lshlrev_b32 v{vwoff}, 4, v{vlane}
    v_add_u32 v{vwoff}, s28, v{vwoff}
    v_lshlrev_b32 v{vrdA}, 4, v{vlane}
    s_lshl_b32 s29, s25, 13
    v_add_u32 v{vrdA}, s29, v{vrdA}
    s_lshl_b32 s29, s26, 12
    s_add_u32 s29, s29, 16384
    v_lshlrev_b32 v{vrdB}, 4, v{vlane}
    v_add_u32 v{vrdB}, s29, v{vrdB}
    """)

    def reads(dst, s):
        return [f"ds_read_b128 v[{dst}:{dst + 3}], v{vrdAc} offset:{s * 1024}",
                f"ds_read_b128 v[{dst + 4}:{dst + 7}], v{vrdAc} offset:{4096 + s * 1024}",
                f"ds_read_b128 v[{dst + 8}:{dst + 11}], v{vrdBc} offset:{s * 1024}"]

    def mfma_list(f):
        a0, a1, b = f, f + 4, f + 8
        return [f"v_mfma_f32_32x32x16_bf16 v[{acc}:{acc + 15}], v[{b}:{b + 3}], v[{B}:{B + 3}], v[{acc}:{acc + 15}]"
                for (acc, B) in ((A0, a0), (A1, a1))]

    NS = K3_NS
    LOOP, iteration = gemm_main(k, 6, NS, K3_STAGE, reads, mfma_list, 3, TOFF, vwoff, vrdA, vrdB, vrdAc, vrdBc)
    for t in range(6):
        k(f"s_sub_u32 s{TOFF + t}, s{TOFF + t}, 4096")
    k("s_mov_b32 s34, s28")
    for st in range(NS - 1):
        for t in range(6):
            for ins in [f"s_add_u32 m0, s34, 0x{t * 4096:x}",
                        f"s_add_u32 s{TOFF + t}, s{TOFF + t}, 4096",
                        f"buffer_load_dwordx4 v{vwoff}, s[12:15], s{TOFF + t} offen lds"]:
                k(ins)
        k(f"s_add_u32 s34, s34, {K3_STAGE}")
    for i in range(32):
        k(f"v_mov_b32 v{ACC + i}, 0")
    k(f"""
    s_mov_b32 s32, 0
    s_mov_b32 s33, 0
    s_waitcnt vmcnt({6 * (NS - 2)})
    s_barrier
    v_add_u32 v{vrdAc}, s33, v{vrdA}
    v_add_u32 v{vrdBc}, s33, v{vrdB}
    """)
    for r in reads(X, 0):
        k(r)
    nmain = 16 - (NS - 1)
    k(f"{LOOP}:")
    iteration(X, Y, True, 6 * (NS - 3) + 5, False)
    k(f"""
    s_add_u32 s32, s32, 1
    s_cmp_lt_u32 s32, {nmain}
    s_cbranch_scc1 {LOOP}
    """)
    for kt in range(nmain, 16):
        iteration(X, Y, False, 6 * (15 - kt - 1), kt == 15)
    if layer == 0:
        srd_from_ptr(k, 16, 8, S * D * 2)
    else:
        srd_from_ptr(k, 16, 10, 4 * MB, off=WS_X2)
    srd_from_ptr(k, 36, 10, 4 * MB, off=WS_X1)
    k(f"""
    s_lshl_b32 s27, s23, 2
    s_lshl_b32 s29, s25, 1
    s_add_u32 s27, s27, s29
    s_lshl_b32 s27, s27, 16
    s_lshl_b32 s29, s24, 7
    s_lshl_b32 s30, s26, 6
    s_add_u32 s29, s29, s30
    s_add_u32 s27, s27, s29
    s_add_u32 s28, s27, 65536
    v_and_b32 v6, 31, v{vlane}
    v_lshlrev_b32 v6, 11, v6
    v_lshrrev_b32 v7, 5, v{vlane}
    v_lshl_add_u32 v6, v7, 5, v6
    """)
    XR = 80
    for t in range(2):
        for hh in range(2):
            r = XR + 8 * t + 4 * hh
            k(f"buffer_load_dwordx4 v[{r}:{r + 3}], v6, s[16:19], s{27 + t} offen offset:{hh * 16}")
    k("s_nop 7")
    k("s_waitcnt vmcnt(0)")
    OR_ = 96
    for t, acc in enumerate((A0, A1)):
        for q in range(8):
            x = XR + 8 * t + q
            k(f"""
            v_cvt_pk_bf16_f32 v8, v{acc + 2 * q}, v{acc + 2 * q + 1}
            v_lshlrev_b32 v9, 16, v8
            v_and_b32 v8, 0xffff0000, v8
            v_lshlrev_b32 v10, 16, v{x}
            v_and_b32 v11, 0xffff0000, v{x}
            v_add_f32 v9, v9, v10
            v_add_f32 v8, v8, v11
            v_cvt_pk_bf16_f32 v{OR_ + 8 * t + q}, v9, v8
            """)
        for hh in range(2):
            r = OR_ + 8 * t + 4 * hh
            k(f"buffer_store_dwordx4 v[{r}:{r + 3}], v6, s[36:39], s{27 + t} offen offset:{hh * 16}")
    k(f"{EX}:")
    return k.text(vgpr=112, sgpr=56)


def gen_ln2(layer):
    k = K(f"ln2_{layer}_kernel")
    EX = k.label("exit")
    X, WR, XN, Fv, T = 8, 16, 24, 32, 48
    k(f"""
    s_cmp_ge_u32 s2, 256
    s_cbranch_scc1 {EX}
    s_load_dwordx2 s[10:11], s[0:1], {KA_WS}
    s_load_dwordx2 s[8:9], s[0:1], {KA_WR}
    s_load_dwordx2 s[6:7], s[0:1], {KA_OUT}
    v_lshrrev_b32 v1, 6, v0
    v_and_b32 v0, 63, v0
    s_nop 0
    v_readfirstlane_b32 s20, v1
    s_lshl_b32 s21, s2, 3
    s_add_u32 s22, s21, s20
    s_lshl_b32 s23, s22, 11
    v_lshlrev_b32 v2, 5, v0
    s_waitcnt lgkmcnt(0)
    """)
    srd_from_ptr(k, 12, 10, 4 * MB, off=WS_X1)
    srd_from_ptr(k, 16, 8, D * 2)
    srd_from_ptr(k, 24, 10, 4 * MB, off=WS_XN2)
    srd_from_ptr(k, 28, 10, 8192, off=WS_R)
    if layer == 0:
        srd_from_ptr(k, 32, 10, 4 * MB, off=WS_X2)
        srd_from_ptr(k, 36, 10, 4 * MB, off=WS_XN_P)
    else:
        srd_from_ptr(k, 32, 6, S * D * 2)
    k(f"""
    buffer_load_dwordx4 v[{X}:{X + 3}], v2, s[12:15], s23 offen
    buffer_load_dwordx4 v[{X + 4}:{X + 7}], v2, s[12:15], s23 offen offset:16
    buffer_load_dwordx4 v[{WR}:{WR + 3}], v2, s[16:19], 0 offen
    buffer_load_dwordx4 v[{WR + 4}:{WR + 7}], v2, s[16:19], 0 offen offset:16
    s_waitcnt vmcnt(2)
    """)
    unpack8(k, X, Fv)
    ln_row(k, Fv, XN, T, 40)
    k(f"""
    buffer_store_dwordx4 v[{XN}:{XN + 3}], v2, s[24:27], s23 offen
    buffer_store_dwordx4 v[{XN + 4}:{XN + 7}], v2, s[24:27], s23 offen offset:16
    s_waitcnt vmcnt(2)
    """)
    a_, b_, c_, d_, s0, s1 = T, T + 1, T + 2, T + 3, T + 4, T + 5
    k(f"v_mov_b32 v{s0}, 0")
    k(f"v_mov_b32 v{s1}, 0")
    for q in range(8):
        k(f"""
        v_lshlrev_b32 v{a_}, 16, v{XN + q}
        v_and_b32 v{b_}, 0xffff0000, v{XN + q}
        v_lshlrev_b32 v{c_}, 16, v{WR + q}
        v_and_b32 v{d_}, 0xffff0000, v{WR + q}
        v_fmac_f32 v{s0}, v{a_}, v{c_}
        v_fmac_f32 v{s1}, v{b_}, v{d_}
        v_add_f32 v{Fv + 2 * q}, v{Fv + 2 * q}, v{a_}
        v_add_f32 v{Fv + 2 * q + 1}, v{Fv + 2 * q + 1}, v{b_}
        v_cvt_pk_bf16_f32 v{X + q}, v{Fv + 2 * q}, v{Fv + 2 * q + 1}
        """)
    k(f"""
    buffer_store_dwordx4 v[{X}:{X + 3}], v2, s[32:35], s23 offen
    buffer_store_dwordx4 v[{X + 4}:{X + 7}], v2, s[32:35], s23 offen offset:16
    v_add_f32 v{s0}, v{s0}, v{s1}
    """)
    wave_sum(k, s0, 40)
    k(f"""
    v_cvt_pk_bf16_f32 v{s0}, v{s0}, v{s0}
    v_and_b32 v{a_}, 0xffff, v{s0}
    v_xor_b32 v{b_}, 0xffff, v{a_}
    v_or_b32 v{c_}, 0x8000, v{a_}
    v_cmp_lt_u32 vcc, 0x7fff, v{a_}
    s_sub_u32 s44, 0xffff, s22
    s_lshl_b32 s45, s22, 2
    v_cndmask_b32 v{a_}, v{c_}, v{b_}, vcc
    v_lshl_or_b32 v{a_}, v{a_}, 16, s44
    v_mov_b32 v{b_}, 0
    v_cmp_eq_u32 vcc, 0, v0
    s_and_saveexec_b64 s[46:47], vcc
    buffer_store_dword v{a_}, v{b_}, s[28:31], s45 offen
    s_mov_b64 exec, s[46:47]
    """)
    if layer == 0:
        unpack8(k, X, Fv)
        ln_row(k, Fv, XN, T, 40)
        store_rows_packed(k, XN, 36, 20, 21, 3, 44)
    k(f"{EX}:")
    return k.text(vgpr=64, sgpr=56)


def row16_max(k, v):
    for ctl in ("quad_perm:[1,0,3,2]", "quad_perm:[2,3,0,1]", "row_half_mirror", "row_mirror"):
        k("s_nop 1")
        k(f"v_max_u32_dpp v{v}, v{v}, v{v} {ctl} row_mask:0xf bank_mask:0xf")


def topk8(k, KEYS, T, SSEL, srd_r, lds_cand, lds_sel):
    m, cand, ad = T, T + 1, T + 2
    k(f"""
    s_lshl_b32 s60, s20, 11
    v_lshlrev_b32 v{ad}, 5, v0
    buffer_load_dwordx4 v[{KEYS}:{KEYS + 3}], v{ad}, s[{srd_r}:{srd_r + 3}], s60 offen
    buffer_load_dwordx4 v[{KEYS + 4}:{KEYS + 7}], v{ad}, s[{srd_r}:{srd_r + 3}], s60 offen offset:16
    v_mov_b32 v{cand}, 0
    s_waitcnt vmcnt(0)
    """)
    for rnd in range(8):
        k(f"v_max_u32 v{m}, v{KEYS}, v{KEYS + 1}")
        for j in range(2, 8):
            k(f"v_max_u32 v{m}, v{m}, v{KEYS + j}")
        row16_max(k, m)
        k(f"""
        s_nop 1
        v_readlane_b32 s60, v{m}, 0
        v_readlane_b32 s61, v{m}, 16
        v_readlane_b32 s62, v{m}, 32
        v_readlane_b32 s63, v{m}, 48
        s_max_u32 s60, s60, s61
        s_max_u32 s62, s62, s63
        s_max_u32 s60, s60, s62
        v_writelane_b32 v{cand}, s60, {rnd}
        """)
        for j in range(8):
            k(f"v_cmp_ne_u32 vcc, s60, v{KEYS + j}")
            k(f"s_nop 1")
            k(f"v_cndmask_b32 v{KEYS + j}, 0, v{KEYS + j}, vcc")
    k(f"""
    s_lshl_b32 s60, s20, 5
    v_lshlrev_b32 v{ad}, 2, v0
    v_add_u32 v{ad}, s60, v{ad}
    v_cmp_gt_u32 vcc, 8, v0
    s_and_saveexec_b64 s[62:63], vcc
    ds_write_b32 v{ad}, v{cand} offset:{lds_cand}
    s_mov_b64 exec, s[62:63]
    s_waitcnt lgkmcnt(0)
    s_barrier
    v_and_b32 v{ad}, 31, v0
    v_lshlrev_b32 v{ad}, 2, v{ad}
    ds_read_b32 v{cand}, v{ad} offset:{lds_cand}
    s_waitcnt lgkmcnt(0)
    """)
    for rnd in range(8):
        k(f"v_mov_b32 v{m}, v{cand}")
        row16_max(k, m)
        k(f"""
        s_nop 1
        v_readlane_b32 s60, v{m}, 0
        v_readlane_b32 s61, v{m}, 16
        s_max_u32 s{SSEL + rnd}, s60, s61
        v_cmp_ne_u32 vcc, s{SSEL + rnd}, v{cand}
        s_nop 1
        v_cndmask_b32 v{cand}, 0, v{cand}, vcc
        """)


def gen_ffn1():
    k = K("ffn1_kernel")
    EX = k.label("exit")
    WG_, WU_ = 64, 96
    ACC = 128
    XV = 160
    KEYS, T = 8, 4
    SSEL = 64
    LDS_CAND, LDS_SEL, LDS_XS, LDS_RED = 0, 128, 512, 8192
    k(f"""
    s_cmp_ge_u32 s2, 224
    s_cbranch_scc1 {EX}
    s_load_dwordx2 s[10:11], s[0:1], {KA_WS}
    s_load_dwordx2 s[4:5], s[0:1], {KA_WG}
    s_load_dwordx2 s[6:7], s[0:1], {KA_WU}
    v_lshrrev_b32 v1, 6, v0
    v_mov_b32 v3, v0
    v_and_b32 v0, 63, v0
    s_nop 0
    v_readfirstlane_b32 s20, v1
    s_mul_i32 s22, s2, 9363
    s_lshr_b32 s22, s22, 18
    s_mul_i32 s21, s22, 28
    s_sub_u32 s21, s2, s21
    s_waitcnt lgkmcnt(0)
    """)
    srd_from_ptr(k, 12, 4, D * F * 2)
    srd_from_ptr(k, 16, 6, D * F * 2)
    srd_from_ptr(k, 24, 10, 8192, off=WS_R)
    srd_from_ptr(k, 28, 10, 4 * MB, off=WS_XN2)
    srd_from_ptr(k, 32, 10, 2 * MB, off=WS_GU_P)
    srd_from_ptr(k, 36, 10, 32, off=WS_SEL)
    k(f"""
    s_lshl_b32 s23, s22, 7
    s_lshl_b32 s40, s20, 5
    s_add_u32 s23, s23, s40
    s_mul_i32 s23, s23, 7168
    s_lshl_b32 s40, s21, 8
    s_add_u32 s23, s23, s40
    v_lshlrev_b32 v2, 2, v0
    """)
    for i in range(32):
        k(f"buffer_load_dword v{WG_ + i}, v2, s[12:15], s23 offen")
        k(f"buffer_load_dword v{WU_ + i}, v2, s[16:19], s23 offen")
        k(f"s_add_u32 s23, s23, 7168")
    if "notopk" in EXP:
        for r in range(8):
            k(f"s_mov_b32 s{SSEL + r}, {0xffff - r}")
    else:
        topk8(k, KEYS, T, SSEL, 24, LDS_CAND, LDS_SEL)
    k(f"v_mov_b32 v{T}, 0")
    for r in range(8):
        k(f"v_writelane_b32 v{T}, s{SSEL + r}, {r}")
    k(f"""
    v_lshlrev_b32 v{T + 1}, 2, v0
    s_lshl_b32 s40, s20, 5
    v_add_u32 v{T + 2}, s40, v{T + 1}
    v_cmp_gt_u32 vcc, 8, v0
    s_and_saveexec_b64 s[62:63], vcc
    ds_write_b32 v{T + 2}, v{T} offset:{LDS_SEL}
    s_or_b32 s41, s2, s20
    s_cmp_eq_u32 s41, 0
    s_cbranch_scc0 {k.name}_nosel
    buffer_store_dword v{T}, v{T + 1}, s[36:39], 0 offen
    {k.name}_nosel:
    s_mov_b64 exec, s[62:63]
    s_waitcnt lgkmcnt(0)
    v_lshrrev_b32 v{T + 1}, 5, v3
    v_lshlrev_b32 v{T + 1}, 2, v{T + 1}
    v_add_u32 v{T + 2}, s40, v{T + 1}
    ds_read_b32 v{T}, v{T + 2} offset:{LDS_SEL}
    s_waitcnt lgkmcnt(0)
    v_and_b32 v{T}, 0xffff, v{T}
    v_sub_u32 v{T}, 0xffff, v{T}
    v_lshlrev_b32 v{T}, 11, v{T}
    v_and_b32 v{T + 2}, 31, v3
    v_lshl_add_u32 v{T}, v{T + 2}, 3, v{T}
    s_lshl_b32 s40, s22, 8
    buffer_load_dwordx2 v[{KEYS}:{KEYS + 1}], v{T}, s[28:31], s40 offen
    v_lshl_add_u32 v{T + 1}, v{T + 2}, 7, v{T + 1}
    s_waitcnt vmcnt(0)
    v_lshlrev_b32 v{T}, 16, v{KEYS}
    v_and_b32 v{T + 2}, 0xffff0000, v{KEYS}
    ds_write_b32 v{T + 1}, v{T} offset:{LDS_XS}
    ds_write_b32 v{T + 1}, v{T + 2} offset:{LDS_XS + 32}
    v_lshlrev_b32 v{T}, 16, v{KEYS + 1}
    v_and_b32 v{T + 2}, 0xffff0000, v{KEYS + 1}
    ds_write_b32 v{T + 1}, v{T} offset:{LDS_XS + 64}
    ds_write_b32 v{T + 1}, v{T + 2} offset:{LDS_XS + 96}
    s_waitcnt lgkmcnt(0)
    s_barrier
    s_lshl_b32 s40, s20, 10
    v_mov_b32 v{T}, s40
    """)
    for i in range(32):
        k(f"v_mov_b32 v{ACC + i}, 0")
    for i in range(32):
        k(f"ds_read_b128 v[{XV}:{XV + 3}], v{T} offset:{LDS_XS + 32 * i}")
        k(f"ds_read_b128 v[{XV + 4}:{XV + 7}], v{T} offset:{LDS_XS + 32 * i + 16}")
        k(f"v_lshlrev_b32 v{T + 1}, 16, v{WG_ + i}")
        k(f"v_and_b32 v{T + 2}, 0xffff0000, v{WG_ + i}")
        k(f"v_lshlrev_b32 v{T + 3}, 16, v{WU_ + i}")
        k(f"v_and_b32 v{KEYS}, 0xffff0000, v{WU_ + i}")
        k("s_waitcnt lgkmcnt(0)")
        for t in range(8):
            k(f"v_fmac_f32 v{ACC + 2 * t}, v{XV + t}, v{T + 1}")
            k(f"v_fmac_f32 v{ACC + 2 * t + 1}, v{XV + t}, v{T + 2}")
            k(f"v_fmac_f32 v{ACC + 16 + 2 * t}, v{XV + t}, v{T + 3}")
            k(f"v_fmac_f32 v{ACC + 16 + 2 * t + 1}, v{XV + t}, v{KEYS}")
    k(f"""
    s_lshl_b32 s40, s20, 13
    v_lshlrev_b32 v{T}, 2, v0
    v_add_u32 v{T + 1}, s40, v{T}
    """)
    for a in range(32):
        k(f"ds_write_b32 v{T + 1}, v{ACC + a} offset:{LDS_RED + a * 256}")
    k(f"""
    s_waitcnt lgkmcnt(0)
    s_barrier
    s_lshl_b32 s40, s20, 11
    v_add_u32 v{T + 1}, s40, v{T}
    """)
    for a in range(8):
        for w in range(4):
            k(f"ds_read_b32 v{WG_ + 4 * a + w}, v{T + 1} offset:{LDS_RED + w * 8192 + a * 256}")
    k("s_waitcnt lgkmcnt(0)")
    for a in range(8):
        k(f"v_add_f32 v{ACC + a}, v{WG_ + 4 * a}, v{WG_ + 4 * a + 1}")
        k(f"v_add_f32 v{WG_ + 4 * a + 2}, v{WG_ + 4 * a + 2}, v{WG_ + 4 * a + 3}")
        k(f"v_add_f32 v{ACC + a}, v{ACC + a}, v{WG_ + 4 * a + 2}")
    k(f"""
    s_lshl_b32 s40, s22, 4
    s_lshl_b32 s41, s20, 2
    s_add_u32 s40, s40, s41
    s_mul_i32 s40, s40, {F * 4}
    s_lshl_b32 s41, s21, 9
    s_add_u32 s40, s40, s41
    v_lshlrev_b32 v{T}, 3, v0
    """)
    for q in range(4):
        k(f"buffer_store_dwordx2 v[{ACC + 2 * q}:{ACC + 2 * q + 1}], v{T}, s[32:35], s40 offen")
        k(f"s_add_u32 s40, s40, {F * 4}")
    k(f"{EX}:")
    return k.text(vgpr=176, sgpr=80)


def gen_ffn2():
    k = K("ffn2_kernel")
    EX = k.label("exit")
    WD_ = 64
    ACC = 128
    XV = 160
    T = 4
    LDS_XS, LDS_RED = 0, 8192
    k(f"""
    s_cmp_ge_u32 s2, 224
    s_cbranch_scc1 {EX}
    s_load_dwordx2 s[10:11], s[0:1], {KA_WS}
    s_load_dwordx2 s[4:5], s[0:1], {KA_WD}
    v_lshrrev_b32 v1, 6, v0
    v_mov_b32 v3, v0
    v_and_b32 v0, 63, v0
    s_nop 0
    v_readfirstlane_b32 s20, v1
    s_and_b32 s21, s2, 7
    s_lshr_b32 s22, s2, 3
    s_waitcnt lgkmcnt(0)
    """)
    srd_from_ptr(k, 12, 4, F * D * 2)
    srd_from_ptr(k, 32, 10, 2 * MB, off=WS_GU_P)
    srd_from_ptr(k, 36, 10, MB, off=WS_Y_P)
    k(f"""
    s_lshl_b32 s23, s22, 7
    s_lshl_b32 s40, s20, 5
    s_add_u32 s23, s23, s40
    s_lshl_b32 s23, s23, 11
    s_lshl_b32 s40, s21, 8
    s_add_u32 s23, s23, s40
    v_lshlrev_b32 v2, 2, v0
    """)
    for i in range(32):
        k(f"buffer_load_dword v{WD_ + i}, v2, s[12:15], s23 offen offset:{(i & 1) * 2048}")
        if i & 1:
            k(f"s_add_u32 s23, s23, 4096")
    k(f"""
    v_lshrrev_b32 v{T}, 5, v3
    v_mul_u32_u24 v{T + 1}, {F * 4}, v{T}
    v_and_b32 v{T + 2}, 31, v3
    v_lshl_add_u32 v{T + 1}, v{T + 2}, 4, v{T + 1}
    s_lshl_b32 s40, s22, 9
    """)
    P = 96
    for kc in range(8):
        for mat in range(2):
            r = P + 8 * kc + 4 * mat
            k(f"buffer_load_dwordx4 v[{r}:{r + 3}], v{T + 1}, s[32:35], s40 offen")
            k(f"s_add_u32 s40, s40, {8 * F * 4}")
    k("s_waitcnt vmcnt(0)")
    for j in range(8):
        for kc in range(1, 8):
            k(f"v_add_f32 v{P + j}, v{P + j}, v{P + 8 * kc + j}")
    k(f"""
    v_lshlrev_b32 v{T}, 2, v{T}
    v_lshl_add_u32 v{T}, v{T + 2}, 7, v{T}
    """)
    a, b, c, d = T + 1, T + 2, T + 3, XV
    for j in range(4):
        g, u = P + j, P + 4 + j
        k(f"""
        v_cvt_pk_bf16_f32 v{a}, v{g}, v{u}
        v_lshlrev_b32 v{g}, 16, v{a}
        v_and_b32 v{u}, 0xffff0000, v{a}
        v_mul_f32 v{a}, 0x{F32_LOG2E:x}, v{g}
        v_exp_f32 v{a}, -v{a}
        s_nop 0
        v_add_f32 v{a}, 1.0, v{a}
        v_rcp_f32 v{b}, v{a}
        s_nop 0
        v_mul_f32 v{c}, v{g}, v{b}
        v_fma_f32 v{d}, -v{c}, v{a}, v{g}
        v_fma_f32 v{c}, v{d}, v{b}, v{c}
        v_cvt_pk_bf16_f32 v{c}, v{c}, v{c}
        v_lshlrev_b32 v{c}, 16, v{c}
        v_mul_f32 v{c}, v{c}, v{u}
        v_cvt_pk_bf16_f32 v{c}, v{c}, v{c}
        v_lshlrev_b32 v{c}, 16, v{c}
        ds_write_b32 v{T}, v{c} offset:{LDS_XS + 32 * j}
        """)
    k(f"""
    s_waitcnt lgkmcnt(0)
    s_barrier
    s_lshl_b32 s40, s20, 10
    v_mov_b32 v{T}, s40
    """)
    for i in range(16):
        k(f"v_mov_b32 v{ACC + i}, 0")
    for i in range(32):
        k(f"ds_read_b128 v[{XV}:{XV + 3}], v{T} offset:{LDS_XS + 32 * i}")
        k(f"ds_read_b128 v[{XV + 4}:{XV + 7}], v{T} offset:{LDS_XS + 32 * i + 16}")
        k(f"v_lshlrev_b32 v{T + 1}, 16, v{WD_ + i}")
        k(f"v_and_b32 v{T + 2}, 0xffff0000, v{WD_ + i}")
        k("s_waitcnt lgkmcnt(0)")
        for t in range(8):
            k(f"v_fmac_f32 v{ACC + 2 * t}, v{XV + t}, v{T + 1}")
            k(f"v_fmac_f32 v{ACC + 2 * t + 1}, v{XV + t}, v{T + 2}")
    k(f"""
    s_lshl_b32 s40, s20, 12
    v_lshlrev_b32 v{T}, 2, v0
    v_add_u32 v{T + 1}, s40, v{T}
    """)
    for a_ in range(16):
        k(f"ds_write_b32 v{T + 1}, v{ACC + a_} offset:{LDS_RED + a_ * 256}")
    k(f"""
    s_waitcnt lgkmcnt(0)
    s_barrier
    s_lshl_b32 s40, s20, 10
    v_add_u32 v{T + 1}, s40, v{T}
    """)
    for a_ in range(4):
        for w in range(4):
            k(f"ds_read_b32 v{WD_ + 4 * a_ + w}, v{T + 1} offset:{LDS_RED + w * 4096 + a_ * 256}")
    k("s_waitcnt lgkmcnt(0)")
    for a_ in range(4):
        k(f"v_add_f32 v{ACC + a_}, v{WD_ + 4 * a_}, v{WD_ + 4 * a_ + 1}")
        k(f"v_add_f32 v{WD_ + 4 * a_ + 2}, v{WD_ + 4 * a_ + 2}, v{WD_ + 4 * a_ + 3}")
        k(f"v_add_f32 v{ACC + a_}, v{ACC + a_}, v{WD_ + 4 * a_ + 2}")
    k(f"""
    s_lshl_b32 s40, s22, 3
    s_lshl_b32 s41, s20, 1
    s_add_u32 s40, s40, s41
    s_lshl_b32 s40, s40, 12
    s_lshl_b32 s41, s21, 9
    s_add_u32 s40, s40, s41
    v_lshlrev_b32 v{T}, 3, v0
    buffer_store_dwordx2 v[{ACC}:{ACC + 1}], v{T}, s[36:39], s40 offen
    s_add_u32 s40, s40, 4096
    buffer_store_dwordx2 v[{ACC + 2}:{ACC + 3}], v{T}, s[36:39], s40 offen
    """)
    k(f"{EX}:")
    return k.text(vgpr=176, sgpr=80)


def gen_fix(layer):
    k = K(f"fix{layer}_kernel")
    EX = k.label("exit")
    P = 16
    k(f"""
    s_cmp_ge_u32 s2, 8
    s_cbranch_scc1 {EX}
    s_load_dwordx2 s[10:11], s[0:1], {KA_WS}
    s_load_dwordx2 s[6:7], s[0:1], {KA_OUT}
    s_waitcnt lgkmcnt(0)
    """)
    srd_from_ptr(k, 12, 10, MB, off=WS_Y_P)
    srd_from_ptr(k, 16, 10, 4 * MB, off=WS_XN2)
    srd_from_ptr(k, 24, 10, 4 * MB, off=WS_X1)
    if layer == 0:
        srd_from_ptr(k, 28, 10, 4 * MB, off=WS_X2)
        srd_from_ptr(k, 32, 10, 4 * MB, off=WS_XN_P)
    else:
        srd_from_ptr(k, 28, 6, S * D * 2)
    k(f"""
    s_add_u32 s36, s10, 0x{WS_SEL:x}
    s_addc_u32 s37, s11, 0
    s_lshl_b32 s21, s2, 2
    s_load_dword s22, s[36:37], s21
    v_lshlrev_b32 v1, 4, v0
    s_lshl_b32 s23, s2, 12
    """)
    for kc in range(28):
        k(f"buffer_load_dwordx4 v[{P + 4 * kc}:{P + 4 * kc + 3}], v1, s[12:15], s23 offen")
        k(f"s_add_u32 s23, s23, {8 * 4096}")
    k(f"""
    s_waitcnt lgkmcnt(0)
    s_and_b32 s38, s22, 0xffff
    """)
    k(f"""
    s_sub_u32 s38, 0xffff, s38
    s_lshl_b32 s39, s38, 11
    v_lshlrev_b32 v2, 3, v0
    buffer_load_dwordx2 v[4:5], v2, s[16:19], s39 offen
    buffer_load_dwordx2 v[6:7], v2, s[24:27], s39 offen
    s_lshr_b32 s40, s22, 16
    s_and_b32 s41, s40, 0x8000
    s_and_b32 s42, s40, 0x7fff
    s_xor_b32 s43, s40, 0xffff
    s_cmp_lg_u32 s41, 0
    s_cselect_b32 s40, s42, s43
    s_lshl_b32 s40, s40, 16
    v_mov_b32 v8, s40
    v_mul_f32 v9, 0x{F32_LOG2E:x}, v8
    v_exp_f32 v9, -v9
    s_nop 0
    v_add_f32 v9, 1.0, v9
    v_rcp_f32 v10, v9
    s_nop 0
    v_fma_f32 v11, -v10, v9, 1.0
    v_fma_f32 v10, v11, v10, v10
    v_cvt_pk_bf16_f32 v10, v10, v10
    v_lshlrev_b32 v10, 16, v10
    s_waitcnt vmcnt(0)
    """)
    for j in range(4):
        for kc in range(1, 28):
            k(f"v_add_f32 v{P + j}, v{P + j}, v{P + 4 * kc + j}")
    for j in range(4):
        xn = 4 + (j >> 1)
        x1 = 6 + (j >> 1)
        sh = (j & 1) == 0
        k(f"""
        v_cvt_pk_bf16_f32 v8, v{P + j}, v{P + j}
        v_lshlrev_b32 v8, 16, v8
        v_mul_f32 v8, v8, v10
        v_cvt_pk_bf16_f32 v8, v8, v8
        v_lshlrev_b32 v8, 16, v8
        """)
        if sh:
            k(f"v_lshlrev_b32 v9, 16, v{xn}")
            k(f"v_lshlrev_b32 v11, 16, v{x1}")
        else:
            k(f"v_and_b32 v9, 0xffff0000, v{xn}")
            k(f"v_and_b32 v11, 0xffff0000, v{x1}")
        k(f"""
        v_add_f32 v8, v8, v9
        v_cvt_pk_bf16_f32 v8, v8, v8
        v_lshlrev_b32 v8, 16, v8
        v_add_f32 v8, v8, v11
        v_cvt_pk_bf16_f32 v8, v8, v8
        v_lshlrev_b32 v{12 + j}, 16, v8
        """)
    k(f"""
    v_lshrrev_b32 v8, 16, v12
    v_or_b32 v4, v13, v8
    v_lshrrev_b32 v8, 16, v14
    v_or_b32 v5, v15, v8
    buffer_store_dwordx2 v[4:5], v2, s[28:31], s39 offen
    """)
    if layer == 0:
        def wg_sum(v, tmp, slot):
            for ctl in ("quad_perm:[1,0,3,2]", "quad_perm:[2,3,0,1]", "row_half_mirror", "row_mirror"):
                k("s_nop 1")
                k(f"v_add_f32_dpp v{v}, v{v}, v{v} {ctl} row_mask:0xf bank_mask:0xf")
            k(f"""
            s_nop 1
            v_readlane_b32 s44, v{v}, 0
            v_readlane_b32 s45, v{v}, 16
            v_readlane_b32 s46, v{v}, 32
            v_readlane_b32 s47, v{v}, 48
            v_mov_b32 v{v}, s44
            v_add_f32 v{v}, s45, v{v}
            v_add_f32 v{v}, s46, v{v}
            v_add_f32 v{v}, s47, v{v}
            v_lshrrev_b32 v{tmp}, 6, v0
            v_lshlrev_b32 v{tmp}, 2, v{tmp}
            ds_write_b32 v{tmp}, v{v} offset:{slot}
            s_waitcnt lgkmcnt(0)
            s_barrier
            v_mov_b32 v{tmp}, 0
            ds_read_b128 v[{P}:{P + 3}], v{tmp} offset:{slot}
            s_waitcnt lgkmcnt(0)
            v_add_f32 v{v}, v{P}, v{P + 1}
            v_add_f32 v{P + 2}, v{P + 2}, v{P + 3}
            v_add_f32 v{v}, v{v}, v{P + 2}
            """)
        k(f"""
        v_add_f32 v8, v12, v13
        v_add_f32 v9, v14, v15
        v_add_f32 v8, v8, v9
        """)
        wg_sum(8, 9, 0)
        k(f"""
        v_mul_f32 v8, 0x{F32_INV1024:x}, v8
        v_sub_f32 v9, v12, v8
        v_mul_f32 v10, v9, v9
        v_sub_f32 v9, v13, v8
        v_fmac_f32 v10, v9, v9
        v_sub_f32 v9, v14, v8
        v_fmac_f32 v10, v9, v9
        v_sub_f32 v9, v15, v8
        v_fmac_f32 v10, v9, v9
        """)
        wg_sum(10, 9, 16)
        k(f"""
        v_mul_f32 v10, 0x{F32_INV1024:x}, v10
        v_cvt_pk_bf16_f32 v9, v8, v10
        v_lshlrev_b32 v8, 16, v9
        v_and_b32 v10, 0xffff0000, v9
        v_add_f32 v10, 0x{F32_1EM5:x}, v10
        v_cvt_pk_bf16_f32 v10, v10, v10
        v_lshlrev_b32 v10, 16, v10
        v_sqrt_f32 v10, v10
        s_nop 0
        v_cvt_pk_bf16_f32 v10, v10, v10
        v_lshlrev_b32 v10, 16, v10
        v_rcp_f32 v11, v10
        s_nop 0
        """)
        for h2 in range(2):
            a0, a1 = 12 + 2 * h2, 13 + 2 * h2
            k(f"""
            v_sub_f32 v{a0}, v{a0}, v8
            v_sub_f32 v{a1}, v{a1}, v8
            v_cvt_pk_bf16_f32 v{a0}, v{a0}, v{a1}
            v_and_b32 v{a1}, 0xffff0000, v{a0}
            v_lshlrev_b32 v{a0}, 16, v{a0}
            """)
            div_bf16_pair(k, a0, a1, 10, 11, 4 + h2, P)
        k(f"""
        s_lshr_b32 s44, s38, 5
        s_lshl_b32 s44, s44, 16
        s_and_b32 s45, s38, 31
        s_lshl_b32 s45, s45, 4
        s_add_u32 s44, s44, s45
        v_lshrrev_b32 v8, 2, v0
        v_lshlrev_b32 v8, 10, v8
        v_bfe_u32 v9, v0, 1, 1
        v_lshl_add_u32 v8, v9, 9, v8
        v_and_b32 v9, 1, v0
        v_lshl_add_u32 v8, v9, 3, v8
        buffer_store_dwordx2 v[4:5], v8, s[32:35], s44 offen
        """)
    k(f"{EX}:")
    return k.text(vgpr=136, sgpr=56)


def build():
    parts = []
    launches = []
    parts.append(gen_prep())
    launches.append("; @launch kernel=prep_kernel grid=(384,1,1) block=(512,1,1) lds=16512")
    parts.append(gen_qkv())
    parts.append(gen_ko())
    parts.append(gen_ffn1())
    parts.append(gen_ffn2())
    for layer in range(2):
        parts.append(gen_wo(layer))
        parts.append(gen_ln2(layer))
        parts.append(gen_fix(layer))
        launches.append(f"; @launch kernel=qkv_kernel grid=(256,1,1) block=(256,1,1) lds={K1_NS * K1_STAGE}")
        launches.append(f"; @launch kernel=ko_kernel grid=(256,1,1) block=(256,1,1) lds=18432")
        launches.append(f"; @launch kernel=wo{layer}_kernel grid=(256,1,1) block=(256,1,1) lds={K3_NS * K3_STAGE}")
        launches.append(f"; @launch kernel=ln2_{layer}_kernel grid=(256,1,1) block=(512,1,1) lds={8 * LNP_STRIDE}")
        launches.append(f"; @launch kernel=ffn1_kernel grid=(224,1,1) block=(256,1,1) lds=40960")
        launches.append(f"; @launch kernel=ffn2_kernel grid=(224,1,1) block=(256,1,1) lds=24576")
        launches.append(f"; @launch kernel=fix{layer}_kernel grid=(8,1,1) block=(256,1,1) lds=64")
    hdr = open("interleave_layers__linear_attn_block__moe_arch_mod__prompt.s.ref").read()
    hl = []
    for ln in hdr.split("\n"):
        if not ln.startswith(";"):
            break
        if "@launch" in ln:
            continue
        hl.append(ln)
    text = "\n".join(hl) + "\n" + "\n".join(launches) + "\n"
    text += '.amdgcn_target "amdgcn-amd-amdhsa--gfx950"\n'
    text += "\n".join(parts)
    return text


if __name__ == "__main__":
    out = sys.argv[1] if len(sys.argv) > 1 else "interleave_layers__linear_attn_block__moe_arch_mod__prompt.s"
    open(out, "w").write(build())
    print("wrote", out)
```

```python
import sys
sys.path.insert(0, "dev")
from asmlib import *
from layout import *

import os
EXP = os.environ.get("EXP", "")
F32_1EM5 = 0x3727C5AC
F32_1EM6 = 0x358637BD
F32_INV1024 = 0x3A800000
F32_LOG2E = 0x3FB8AA3B


def reduce8_add(k, v, t):
    k(f"s_nop 1")
    k(f"v_add_f32_dpp v{v}, v{v}, v{v} quad_perm:[1,0,3,2] row_mask:0xf bank_mask:0xf")
    k(f"s_nop 1")
    k(f"v_add_f32_dpp v{v}, v{v}, v{v} quad_perm:[2,3,0,1] row_mask:0xf bank_mask:0xf")
    k(f"s_nop 1")
    k(f"v_add_f32_dpp v{v}, v{v}, v{v} row_half_mirror row_mask:0xf bank_mask:0xf")


def ln8(k, X, OUT, T):
    lo, hi, s0, s1, mean, mb, sd, rs, q0, q1, e0, e1 = [T + i for i in range(12)]
    k(f"v_mov_b32 v{s0}, 0")
    k(f"v_mov_b32 v{s1}, 0")
    for p in range(64):
        k(f"v_lshlrev_b32 v{lo}, 16, v{X + p}")
        k(f"v_and_b32 v{hi}, 0xffff0000, v{X + p}")
        k(f"v_add_f32 v{s0}, v{s0}, v{lo}")
        k(f"v_add_f32 v{s1}, v{s1}, v{hi}")
    k(f"v_add_f32 v{s0}, v{s0}, v{s1}")
    reduce8_add(k, s0, None)
    k(f"v_mul_f32 v{mean}, 0x{F32_INV1024:x}, v{s0}")
    k(f"v_mov_b32 v{s0}, 0")
    k(f"v_mov_b32 v{s1}, 0")
    for p in range(64):
        k(f"v_lshlrev_b32 v{lo}, 16, v{X + p}")
        k(f"v_and_b32 v{hi}, 0xffff0000, v{X + p}")
        k(f"v_sub_f32 v{lo}, v{lo}, v{mean}")
        k(f"v_sub_f32 v{hi}, v{hi}, v{mean}")
        k(f"v_fmac_f32 v{s0}, v{lo}, v{lo}")
        k(f"v_fmac_f32 v{s1}, v{hi}, v{hi}")
    k(f"v_add_f32 v{s0}, v{s0}, v{s1}")
    reduce8_add(k, s0, None)
    k(f"v_mul_f32 v{s0}, 0x{F32_INV1024:x}, v{s0}")
    k(f"v_cvt_pk_bf16_f32 v{q0}, v{mean}, v{s0}")
    k(f"v_lshlrev_b32 v{mb}, 16, v{q0}")
    k(f"v_and_b32 v{s0}, 0xffff0000, v{q0}")
    k(f"v_add_f32 v{s0}, 0x{F32_1EM5:x}, v{s0}")
    k(f"v_cvt_pk_bf16_f32 v{s0}, v{s0}, v{s0}")
    k(f"v_lshlrev_b32 v{s0}, 16, v{s0}")
    k(f"v_sqrt_f32 v{s0}, v{s0}")
    k(f"s_nop 0")
    k(f"v_cvt_pk_bf16_f32 v{s0}, v{s0}, v{s0}")
    k(f"v_lshlrev_b32 v{sd}, 16, v{s0}")
    k(f"v_rcp_f32 v{rs}, v{sd}")
    k(f"s_nop 0")
    for p in range(64):
        k(f"v_lshlrev_b32 v{lo}, 16, v{X + p}")
        k(f"v_and_b32 v{hi}, 0xffff0000, v{X + p}")
        k(f"v_sub_f32 v{lo}, v{lo}, v{mb}")
        k(f"v_sub_f32 v{hi}, v{hi}, v{mb}")
        k(f"v_cvt_pk_bf16_f32 v{lo}, v{lo}, v{hi}")
        k(f"v_and_b32 v{hi}, 0xffff0000, v{lo}")
        k(f"v_lshlrev_b32 v{lo}, 16, v{lo}")
        k(f"v_mul_f32 v{q0}, v{lo}, v{rs}")
        k(f"v_mul_f32 v{q1}, v{hi}, v{rs}")
        k(f"v_fma_f32 v{e0}, -v{q0}, v{sd}, v{lo}")
        k(f"v_fma_f32 v{e1}, -v{q1}, v{sd}, v{hi}")
        k(f"v_fma_f32 v{q0}, v{e0}, v{rs}, v{q0}")
        k(f"v_fma_f32 v{q1}, v{e1}, v{rs}, v{q1}")
        k(f"v_cvt_pk_bf16_f32 v{OUT + p}, v{q0}, v{q1}")


def wave_sum(k, v, s0):
    for ctl in ("quad_perm:[1,0,3,2]", "quad_perm:[2,3,0,1]", "row_half_mirror", "row_mirror"):
        k("s_nop 1")
        k(f"v_add_f32_dpp v{v}, v{v}, v{v} {ctl} row_mask:0xf bank_mask:0xf")
    k(f"""
    s_nop 1
    v_readlane_b32 s{s0}, v{v}, 0
    v_readlane_b32 s{s0 + 1}, v{v}, 16
    v_readlane_b32 s{s0 + 2}, v{v}, 32
    v_readlane_b32 s{s0 + 3}, v{v}, 48
    s_nop 1
    v_mov_b32 v{v}, s{s0}
    v_add_f32 v{v}, s{s0 + 1}, v{v}
    v_add_f32 v{v}, s{s0 + 2}, v{v}
    v_add_f32 v{v}, s{s0 + 3}, v{v}
    """)


def unpack8(k, P, Fv):
    for q in range(8):
        k(f"v_lshlrev_b32 v{Fv + 2 * q}, 16, v{P + q}")
        k(f"v_and_b32 v{Fv + 2 * q + 1}, 0xffff0000, v{P + q}")


def ln_row(k, Fv, OUT, T, s0):
    a, b, mean, mb, sd, rs, q0, q1, e0, e1 = [T + i for i in range(10)]
    k(f"v_add_f32 v{a}, v{Fv}, v{Fv + 1}")
    k(f"v_add_f32 v{b}, v{Fv + 2}, v{Fv + 3}")
    for i in range(4, 16, 2):
        k(f"v_add_f32 v{a}, v{a}, v{Fv + i}")
        k(f"v_add_f32 v{b}, v{b}, v{Fv + i + 1}")
    k(f"v_add_f32 v{a}, v{a}, v{b}")
    wave_sum(k, a, s0)
    k(f"v_mul_f32 v{mean}, 0x{F32_INV1024:x}, v{a}")
    k(f"v_mov_b32 v{a}, 0")
    k(f"v_mov_b32 v{b}, 0")
    for i in range(0, 16, 2):
        k(f"v_sub_f32 v{q0}, v{Fv + i}, v{mean}")
        k(f"v_sub_f32 v{q1}, v{Fv + i + 1}, v{mean}")
        k(f"v_fmac_f32 v{a}, v{q0}, v{q0}")
        k(f"v_fmac_f32 v{b}, v{q1}, v{q1}")
    k(f"v_add_f32 v{a}, v{a}, v{b}")
    wave_sum(k, a, s0)
    k(f"""
    v_mul_f32 v{a}, 0x{F32_INV1024:x}, v{a}
    v_cvt_pk_bf16_f32 v{q0}, v{mean}, v{a}
    v_lshlrev_b32 v{mb}, 16, v{q0}
    v_and_b32 v{a}, 0xffff0000, v{q0}
    v_add_f32 v{a}, 0x{F32_1EM5:x}, v{a}
    v_cvt_pk_bf16_f32 v{a}, v{a}, v{a}
    v_lshlrev_b32 v{a}, 16, v{a}
    v_sqrt_f32 v{a}, v{a}
    s_nop 0
    v_cvt_pk_bf16_f32 v{a}, v{a}, v{a}
    v_lshlrev_b32 v{sd}, 16, v{a}
    v_rcp_f32 v{rs}, v{sd}
    s_nop 0
    """)
    for q in range(8):
        k(f"""
        v_sub_f32 v{a}, v{Fv + 2 * q}, v{mb}
        v_sub_f32 v{b}, v{Fv + 2 * q + 1}, v{mb}
        v_cvt_pk_bf16_f32 v{a}, v{a}, v{b}
        v_and_b32 v{b}, 0xffff0000, v{a}
        v_lshlrev_b32 v{a}, 16, v{a}
        v_mul_f32 v{q0}, v{a}, v{rs}
        v_mul_f32 v{q1}, v{b}, v{rs}
        v_fma_f32 v{e0}, -v{q0}, v{sd}, v{a}
        v_fma_f32 v{e1}, -v{q1}, v{sd}, v{b}
        v_fma_f32 v{q0}, v{e0}, v{rs}, v{q0}
        v_fma_f32 v{q1}, v{e1}, v{rs}, v{q1}
        v_cvt_pk_bf16_f32 v{OUT + q}, v{q0}, v{q1}
        """)


LNP_STRIDE = 2064


def store_rows_packed(k, P, srd, swave, srow0, vt, stmp):
    a, b, c = vt, vt + 1, vt + 2
    k(f"""
    s_mul_i32 s{stmp}, s{swave}, {LNP_STRIDE}
    v_lshlrev_b32 v{a}, 5, v0
    v_add_u32 v{a}, s{stmp}, v{a}
    ds_write_b128 v{a}, v[{P}:{P + 3}]
    ds_write_b128 v{a}, v[{P + 4}:{P + 7}] offset:16
    s_lshl_b32 s{stmp}, s{swave}, 6
    v_add_u32 v{a}, s{stmp}, v0
    v_and_b32 v{b}, 7, v{a}
    v_lshrrev_b32 v{a}, 3, v{a}
    v_mul_u32_u24 v{c}, {LNP_STRIDE}, v{b}
    v_lshl_add_u32 v{c}, v{a}, 4, v{c}
    s_waitcnt lgkmcnt(0)
    s_barrier
    ds_read_b128 v[{P}:{P + 3}], v{c}
    ds_read_b128 v[{P + 4}:{P + 7}], v{c} offset:1024
    s_and_b32 s{stmp}, s{srow0}, 31
    v_add_u32 v{b}, s{stmp}, v{b}
    v_lshlrev_b32 v{b}, 4, v{b}
    v_and_b32 v{c}, 1, v{a}
    v_lshl_add_u32 v{b}, v{c}, 9, v{b}
    v_lshrrev_b32 v{a}, 1, v{a}
    v_lshl_add_u32 v{b}, v{a}, 10, v{b}
    s_lshr_b32 s{stmp}, s{srow0}, 5
    s_lshl_b32 s{stmp}, s{stmp}, 16
    s_waitcnt lgkmcnt(0)
    buffer_store_dwordx4 v[{P}:{P + 3}], v{b}, s[{srd}:{srd + 3}], s{stmp} offen
    s_add_u32 s{stmp}, s{stmp}, 32768
    buffer_store_dwordx4 v[{P + 4}:{P + 7}], v{b}, s[{srd}:{srd + 3}], s{stmp} offen
    """)

def store_xn_packed(k, SRC, srd, vtmp, vlane, srow_base, stmp):
    a, b = vtmp, vtmp + 1
    k(f"v_lshrrev_b32 v{a}, 3, v{vlane}")
    k(f"v_add_u32 v{a}, s{srow_base}, v{a}")
    k(f"v_and_b32 v{b}, 31, v{a}")
    k(f"v_lshrrev_b32 v{a}, 5, v{a}")
    k(f"v_lshlrev_b32 v{a}, 16, v{a}")
    k(f"v_lshl_add_u32 v{a}, v{b}, 4, v{a}")
    k(f"v_and_b32 v{b}, 1, v{vlane}")
    k(f"v_lshl_add_u32 v{a}, v{b}, 9, v{a}")
    k(f"v_bfe_u32 v{b}, v{vlane}, 1, 2")
    k(f"v_lshl_add_u32 v{a}, v{b}, 10, v{a}")
    for it in range(16):
        k(f"s_mov_b32 s{stmp}, 0x{it * 4096:x}")
        k(f"buffer_store_dwordx4 v[{SRC + 4 * it}:{SRC + 4 * it + 3}], v{a}, s[{srd}:{srd + 3}], s{stmp} offen")


def gen_prep():
    k = K("prep_kernel")
    LN = k.label("ln")
    WO = k.label("wo")
    ST = k.label("st")
    EX = k.label("exit")
    k(f"""
    s_cmp_ge_u32 s2, 384
    s_cbranch_scc1 {EX}
    s_load_dwordx2 s[4:5], s[0:1], {KA_AX}
    s_load_dwordx2 s[6:7], s[0:1], {KA_WQKV}
    s_load_dwordx2 s[8:9], s[0:1], {KA_WO}
    s_load_dwordx2 s[10:11], s[0:1], {KA_WS}
    v_lshrrev_b32 v1, 6, v0
    v_and_b32 v0, 63, v0
    s_nop 0
    v_readfirstlane_b32 s20, v1
    s_waitcnt lgkmcnt(0)
    s_cmp_ge_u32 s2, 128
    s_cbranch_scc1 {LN}
    """)
    k(f"""
    s_lshl_b32 s21, s2, 3
    s_add_u32 s21, s21, s20
    s_lshl_b32 s21, s21, 3
    v_lshrrev_b32 v2, 5, v0
    v_and_b32 v3, 31, v0
    s_cmp_ge_u32 s21, 6144
    s_cbranch_scc1 {WO}
    """)
    srd_from_ptr(k, 12, 6, 1024 * 3072 * 2)
    k(f"""
    s_lshr_b32 s22, s21, 6
    s_and_b32 s23, s21, 63
    s_mul_i32 s23, s23, 98304
    s_lshl_b32 s22, s22, 6
    s_add_u32 s22, s22, s23
    s_mov_b32 s23, 98304
    v_mul_u32_u24 v4, 49152, v2
    v_lshl_add_u32 v4, v3, 1, v4
    """)
    for j in range(8):
        k(f"s_mov_b32 s{24 + j}, {j * 6144}")
    k(f"s_branch {ST}")
    k(f"{WO}:")
    srd_from_ptr(k, 12, 8, 1024 * 1024 * 2)
    k(f"""
    s_sub_u32 s22, s21, 6144
    s_and_b32 s23, s22, 63
    s_lshr_b32 s22, s22, 6
    s_lshl_b32 s23, s23, 15
    s_lshl_b32 s22, s22, 6
    s_add_u32 s22, s22, s23
    s_mov_b32 s23, 32768
    v_bfe_u32 v5, v3, 2, 1
    v_lshlrev_b32 v5, 4, v5
    v_and_b32 v6, 3, v3
    v_add_u32 v5, v5, v6
    v_lshrrev_b32 v6, 3, v3
    v_lshl_add_u32 v5, v6, 2, v5
    v_lshlrev_b32 v4, 13, v2
    v_lshl_add_u32 v4, v5, 1, v4
    """)
    for j in range(8):
        k(f"s_mov_b32 s{24 + j}, {(8 * (j >> 2) + (j & 3)) * 2048}")
    k(f"{ST}:")
    srd_from_ptr(k, 16, 10, WS_WQKV_P + 8 * MB, off=0)
    for i in range(8):
        k(f"v_add_u32 v5, s22, v4")
        for j in range(8):
            k(f"buffer_load_ushort v{16 + 8 * i + j}, v5, s[12:15], s{24 + j} offen")
        k(f"s_add_u32 s22, s22, s23")
    k(f"""
    s_lshl_b32 s21, s21, 10
    v_lshlrev_b32 v6, 4, v0
    """)
    for i in range(8):
        k(f"s_waitcnt vmcnt({8 * (7 - i)})")
        for q in range(4):
            k(f"v_lshl_or_b32 v{80 + 4 * i + q}, v{16 + 8 * i + 2 * q + 1}, 16, v{16 + 8 * i + 2 * q}")
        k(f"buffer_store_dwordx4 v[{80 + 4 * i}:{83 + 4 * i}], v6, s[16:19], s21 offen")
        k(f"s_add_u32 s21, s21, 1024")
    k(f"s_branch {EX}")
    k(f"{LN}:")
    srd_from_ptr(k, 12, 4, S * D * 2)
    srd_from_ptr(k, 16, 10, 4 * MB, off=WS_XN_P)
    k(f"""
    s_sub_u32 s21, s2, 128
    s_lshl_b32 s21, s21, 3
    s_add_u32 s22, s21, s20
    s_lshl_b32 s23, s22, 11
    v_lshlrev_b32 v2, 5, v0
    buffer_load_dwordx4 v[8:11], v2, s[12:15], s23 offen
    buffer_load_dwordx4 v[12:15], v2, s[12:15], s23 offen offset:16
    s_waitcnt vmcnt(0)
    """)
    unpack8(k, 8, 32)
    ln_row(k, 32, 24, 48, 40)
    store_rows_packed(k, 24, 16, 20, 21, 3, 44)
    k(f"{EX}:")
    return k.text(vgpr=144, sgpr=56)


def phi_pair(k, a0, a1, dst, T, zsum=None):
    t0, t1, e0, e1, p0, p1 = [T + i for i in range(6)]
    k(f"""
    v_cvt_pk_bf16_f32 v{e0}, v{a0}, v{a1}
    v_lshlrev_b32 v{t0}, 16, v{e0}
    v_and_b32 v{t1}, 0xffff0000, v{e0}
    v_mul_f32 v{e0}, 0x{F32_LOG2E:x}, v{t0}
    v_mul_f32 v{e1}, 0x{F32_LOG2E:x}, v{t1}
    v_exp_f32 v{e0}, v{e0}
    v_exp_f32 v{e1}, v{e1}
    v_add_f32 v{p0}, 1.0, v{t0}
    v_add_f32 v{p1}, 1.0, v{t1}
    v_cmp_lt_f32 vcc, 0, v{t0}
    s_nop 1
    v_cndmask_b32 v{e0}, v{e0}, v{p0}, vcc
    v_cmp_lt_f32 vcc, 0, v{t1}
    s_nop 1
    v_cndmask_b32 v{e1}, v{e1}, v{p1}, vcc
    v_cvt_pk_bf16_f32 v{e0}, v{e0}, v{e1}
    v_lshlrev_b32 v{t0}, 16, v{e0}
    v_and_b32 v{t1}, 0xffff0000, v{e0}
    v_add_f32 v{t0}, 0x{F32_1EM6:x}, v{t0}
    v_add_f32 v{t1}, 0x{F32_1EM6:x}, v{t1}
    v_cvt_pk_bf16_f32 v{dst}, v{t0}, v{t1}
    """)
    if zsum is not None:
        k(f"""
        v_lshlrev_b32 v{t0}, 16, v{dst}
        v_and_b32 v{t1}, 0xffff0000, v{dst}
        v_add_f32 v{zsum}, v{zsum}, v{t0}
        v_add_f32 v{zsum}, v{zsum}, v{t1}
        """)


def gemm_main(k, NT, NS, STAGE, reads, mfma_list, nread, TOFF, vwoff, vrdA, vrdB, vrdAc, vrdBc):
    LOOP = k.label("loop")
    nm = len(mfma_list(0))

    def dma_one(t):
        return [f"s_add_u32 m0, s34, 0x{t * 4096:x}",
                f"s_add_u32 s{TOFF + t}, s{TOFF + t}, 4096",
                f"buffer_load_dwordx4 v{vwoff}, s[12:15], s{TOFF + t} offen lds"]

    def iteration(X, Y, dma, vm, last):
        sets = [X, Y, X, Y]
        dq = [dma_one(t) for t in range(NT)] if (dma and "nodma" not in EXP) else []
        for st in range(4):
            cur, nxt = sets[st], sets[(st + 1) % 4]
            mf = mfma_list(cur)
            rd = reads(nxt, (st + 1) % 4) if not (last and st == 3) else []
            k("s_waitcnt lgkmcnt(0)")
            gaps = [[] for _ in range(nm)]
            if st == 3 and not last:
                gaps[0] += ([] if "nobar" in EXP else [f"s_waitcnt vmcnt({vm})", "s_barrier"]) + [
                            f"s_add_u32 s33, s33, {STAGE}",
                            f"s_cmp_eq_u32 s33, {NS * STAGE}",
                            f"s_cselect_b32 s33, 0, s33",
                            f"v_add_u32 v{vrdAc}, s33, v{vrdA}",
                            f"v_add_u32 v{vrdBc}, s33, v{vrdB}"]
            for i, r in enumerate(rd):
                gaps[min(i // 2, nm - 1)].append(r)
            per = (len(dq) + 3 - st) // (4 - st) if dq else 0
            for j in range(per):
                g = nm - 1 - (j % max(1, nm - (nread + 1) // 2))
                gaps[g] += dq.pop(0)
            for m in range(nm):
                k(mf[m])
                for ins in gaps[m]:
                    k(ins)
        if dma:
            k(f"s_add_u32 s34, s34, {STAGE}")
            k(f"s_cmp_ge_u32 s34, {NS * STAGE}")
            k(f"s_cselect_b32 s35, {NS * STAGE}, 0")
            k(f"s_sub_u32 s34, s34, s35")

    return LOOP, iteration

K1_STAGE = 40960
K1_NS = int(os.environ.get("K1NS", "4"))


def gen_qkv():
    k = K("qkv_kernel")
    EX = k.label("exit")
    LOOP = k.label("loop")
    X, Y = 16, 36
    ACC = 64
    Q0, Q1, K0, K1_, V0, V1 = [ACC + 16 * i for i in range(6)]
    vlane, vwoff, vrdA, vrdB, vrdAc, vrdBc = 0, 1, 2, 3, 4, 5
    TOFF = 40
    k(f"""
    s_cmp_ge_u32 s2, 256
    s_cbranch_scc1 {EX}
    s_load_dwordx2 s[10:11], s[0:1], {KA_WS}
    v_lshrrev_b32 v1, 6, v0
    v_and_b32 v0, 63, v0
    s_nop 0
    v_readfirstlane_b32 s20, v1
    s_and_b32 s21, s2, 7
    s_lshr_b32 s22, s2, 3
    s_and_b32 s23, s21, 1
    s_lshl_b32 s23, s23, 3
    s_and_b32 s24, s22, 7
    s_add_u32 s23, s23, s24
    s_lshr_b32 s24, s21, 1
    s_lshl_b32 s24, s24, 2
    s_lshr_b32 s25, s22, 3
    s_add_u32 s24, s24, s25
    s_lshr_b32 s25, s20, 1
    s_and_b32 s26, s20, 1
    s_waitcnt lgkmcnt(0)
    """)
    if "stamp" in EXP:
        k("s_memtime s[70:71]")
        k("s_memrealtime s[76:77]")
    srd_from_ptr(k, 12, 10, 0x1400000)
    k(f"s_lshl_b32 s27, s23, 18")
    for t in range(4):
        k(f"s_add_u32 s{TOFF + t}, s27, 0x{WS_XN_P + t * 65536:x}")
    k(f"s_lshl_b32 s27, s24, 17")
    for u in range(6):
        k(f"s_add_u32 s{TOFF + 4 + u}, s27, 0x{WS_WQKV_P + ((u >> 1) * 32 + (u & 1)) * 65536:x}")
    k(f"""
    s_lshl_b32 s28, s20, 10
    v_lshlrev_b32 v{vwoff}, 4, v{vlane}
    v_add_u32 v{vwoff}, s28, v{vwoff}
    v_lshlrev_b32 v{vrdA}, 4, v{vlane}
    s_lshl_b32 s29, s25, 13
    v_add_u32 v{vrdA}, s29, v{vrdA}
    s_lshl_b32 s29, s26, 12
    s_add_u32 s29, s29, 16384
    v_lshlrev_b32 v{vrdB}, 4, v{vlane}
    v_add_u32 v{vrdB}, s29, v{vrdB}
    """)

    def reads(dst, s):
        if "nolds" in EXP:
            return []
        return [f"ds_read_b128 v[{dst}:{dst + 3}], v{vrdAc} offset:{s * 1024}",
                f"ds_read_b128 v[{dst + 4}:{dst + 7}], v{vrdAc} offset:{4096 + s * 1024}",
                f"ds_read_b128 v[{dst + 8}:{dst + 11}], v{vrdBc} offset:{s * 1024}",
                f"ds_read_b128 v[{dst + 12}:{dst + 15}], v{vrdBc} offset:{8192 + s * 1024}",
                f"ds_read_b128 v[{dst + 16}:{dst + 19}], v{vrdBc} offset:{16384 + s * 1024}"]

    def mfma_list(f):
        a0, a1, bq, bk, bv = f, f + 4, f + 8, f + 12, f + 16
        out = []
        for (acc, A, B) in ((Q0, bq, a0), (K0, a0, bk), (V0, a0, bv), (Q1, bq, a1), (K1_, a1, bk), (V1, a1, bv)):
            out.append(f"v_mfma_f32_32x32x16_bf16 v[{acc}:{acc + 15}], v[{A}:{A + 3}], v[{B}:{B + 3}], v[{acc}:{acc + 15}]")
        return out

    NS = K1_NS
    LOOP, iteration = gemm_main(k, 10, NS, K1_STAGE, reads, mfma_list, 5, TOFF, vwoff, vrdA, vrdB, vrdAc, vrdBc)
    for t in range(10):
        k(f"s_sub_u32 s{TOFF + t}, s{TOFF + t}, 4096")
    k("s_mov_b32 s34, s28")
    for st in range(NS - 1):
        for t in range(10):
            for ins in [f"s_add_u32 m0, s34, 0x{t * 4096:x}",
                        f"s_add_u32 s{TOFF + t}, s{TOFF + t}, 4096",
                        f"buffer_load_dwordx4 v{vwoff}, s[12:15], s{TOFF + t} offen lds"]:
                k(ins)
        k(f"s_add_u32 s34, s34, {K1_STAGE}")
    for i in range(96):
        k(f"v_mov_b32 v{ACC + i}, 0")
    k(f"""
    s_mov_b32 s32, 0
    s_mov_b32 s33, 0
    s_waitcnt vmcnt({10 * (NS - 2)})
    s_barrier
    v_add_u32 v{vrdAc}, s33, v{vrdA}
    v_add_u32 v{vrdBc}, s33, v{vrdB}
    """)
    for r in reads(X, 0):
        k(r)
    nmain = 16 - (NS - 1)
    k(f"{LOOP}:")
    iteration(X, Y, True, 10 * (NS - 3) + 8, False)
    k(f"""
    s_add_u32 s32, s32, 1
    s_cmp_lt_u32 s32, {nmain}
    s_cbranch_scc1 {LOOP}
    """)
    for kt in range(nmain, 16):
        iteration(X, Y, False, 10 * (15 - kt - 1), kt == 15)
    k("s_nop 15")
    k("s_nop 15")
    if "stamp" in EXP:
        k("s_memtime s[72:73]")
    T = 8
    PK = 160
    PV = 176
    PQ = 192
    ZS = 200
    KVA = 208
    k(f"v_mov_b32 v{ZS}, 0")
    srd_from_ptr(k, 16, 10, 4 * MB, off=WS_PQ_P)
    k(f"""
    s_lshl_b32 s27, s23, 2
    s_lshl_b32 s29, s25, 1
    s_add_u32 s27, s27, s29
    s_lshl_b32 s27, s27, 16
    s_lshl_b32 s29, s24, 1
    s_add_u32 s29, s29, s26
    s_lshl_b32 s30, s29, 11
    s_add_u32 s27, s27, s30
    v_lshlrev_b32 v6, 4, v{vlane}
    """)
    for t, acc in enumerate((Q0, Q1)):
        for q in range(8):
            phi_pair(k, acc + 2 * q, acc + 2 * q + 1, PQ + q, T)
        k(f"buffer_store_dwordx4 v[{PQ}:{PQ + 3}], v6, s[16:19], s27 offen")
        k(f"buffer_store_dwordx4 v[{PQ + 4}:{PQ + 7}], v6, s[16:19], s27 offen offset:1024")
        if t == 0:
            k("s_nop 1")
            k(f"s_add_u32 s27, s27, 65536")
    for t, acc in enumerate((K0, K1_)):
        for q in range(8):
            phi_pair(k, acc + 2 * q, acc + 2 * q + 1, PK + 8 * t + q, T, zsum=ZS)
    for t, acc in enumerate((V0, V1)):
        for q in range(8):
            k(f"v_cvt_pk_bf16_f32 v{PV + 8 * t + q}, v{acc + 2 * q}, v{acc + 2 * q + 1}")
    k("s_nop 1")
    first = True
    for t in range(2):
        for c in range(2):
            a = PK + 8 * t + 4 * c
            b = PV + 8 * t + 4 * c
            cc = "0" if first else f"v[{KVA}:{KVA + 15}]"
            k(f"v_mfma_f32_32x32x16_bf16 v[{KVA}:{KVA + 15}], v[{a}:{a + 3}], v[{b}:{b + 3}], {cc}")
            first = False
    k(f"""
    v_mov_b32 v{ZS + 1}, v{ZS}
    s_nop 1
    v_permlane32_swap_b32 v{ZS}, v{ZS + 1}
    v_add_f32 v{ZS}, v{ZS}, v{ZS + 1}
    s_nop 15
    s_barrier
    """)
    RD = k.label("rd")
    k(f"""
    s_lshl_b32 s27, s26, 13
    v_lshlrev_b32 v7, 2, v{vlane}
    v_add_u32 v7, s27, v7
    v_add_u32 v6, s27, v6
    s_cmp_eq_u32 s25, 0
    s_cbranch_scc1 {RD}
    """)
    for iq in range(4):
        k(f"ds_write_b128 v6, v[{KVA + 4 * iq}:{KVA + 4 * iq + 3}] offset:{iq * 1024}")
    k(f"""
    ds_write_b32 v7, v{ZS} offset:4096
    s_waitcnt lgkmcnt(0)
    s_barrier
    s_branch {EX}
    {RD}:
    s_barrier
    """)
    for iq in range(4):
        k(f"ds_read_b128 v[{PK + 4 * iq}:{PK + 4 * iq + 3}], v6 offset:{iq * 1024}")
    k(f"ds_read_b32 v{ZS + 1}, v7 offset:4096")
    srd_from_ptr(k, 16, 10, 2 * MB, off=WS_KVP)
    srd_from_ptr(k, 36, 10, 64 * 1024, off=WS_ZP)
    k(f"""
    s_lshl_b32 s27, s23, 5
    s_add_u32 s27, s27, s29
    s_lshl_b32 s30, s27, 7
    s_lshl_b32 s27, s27, 12
    v_lshlrev_b32 v6, 4, v{vlane}
    v_lshlrev_b32 v7, 2, v{vlane}
    s_waitcnt lgkmcnt(0)
    """)
    for i in range(16):
        k(f"v_add_f32 v{KVA + i}, v{KVA + i}, v{PK + i}")
    k(f"v_add_f32 v{ZS}, v{ZS}, v{ZS + 1}")
    for iq in range(4):
        k(f"buffer_store_dwordx4 v[{KVA + 4 * iq}:{KVA + 4 * iq + 3}], v6, s[16:19], s27 offen offset:{iq * 1024}")
    k(f"""
    v_cmp_gt_u32 vcc, 32, v{vlane}
    s_and_saveexec_b64 s[34:35], vcc
    buffer_store_dword v{ZS}, v7, s[36:39], s30 offen
    """)
    if "stamp" in EXP:
        k(f"""
        s_mov_b64 exec, -1
        s_memtime s[74:75]
        s_memrealtime s[78:79]
        s_load_dwordx2 s[80:81], s[0:1], {KA_DBG}
        s_waitcnt lgkmcnt(0)
        s_cmp_lg_u32 s2, 0
        s_cbranch_scc1 {EX}
        """)
        srd_from_ptr(k, 84, 80, 256)
        for i in range(10):
            k(f"v_mov_b32 v{8 + i}, s{70 + i}")
        k("""
        v_mov_b32 v6, 0
        buffer_store_dwordx4 v[8:11], v6, s[84:87], 0 offen
        buffer_store_dwordx4 v[12:15], v6, s[84:87], 0 offen offset:16
        buffer_store_dwordx2 v[16:17], v6, s[84:87], 0 offen offset:32
        """)
    k(f"{EX}:")
    return k.text(vgpr=224, sgpr=96)


def div_bf16_pair(k, n0, n1, den, rden, dst, T):
    q0, q1, e0, e1 = T, T + 1, T + 2, T + 3
    k(f"""
    v_mul_f32 v{q0}, v{n0}, v{rden}
    v_mul_f32 v{q1}, v{n1}, v{rden}
    v_fma_f32 v{e0}, -v{q0}, v{den}, v{n0}
    v_fma_f32 v{e1}, -v{q1}, v{den}, v{n1}
    v_fma_f32 v{q0}, v{e0}, v{rden}, v{q0}
    v_fma_f32 v{q1}, v{e1}, v{rden}, v{q1}
    v_cvt_pk_bf16_f32 v{dst}, v{q0}, v{q1}
    """)


def gen_ko():
    k = K("ko_kernel")
    EX = k.label("exit")
    k(f"""
    s_cmp_ge_u32 s2, 256
    s_cbranch_scc1 {EX}
    s_load_dwordx2 s[10:11], s[0:1], {KA_WS}
    v_lshrrev_b32 v1, 6, v0
    v_and_b32 v0, 63, v0
    s_nop 0
    v_readfirstlane_b32 s20, v1
    s_and_b32 s21, s2, 31
    s_lshr_b32 s22, s2, 5
    v_lshlrev_b32 v2, 4, v0
    v_and_b32 v3, 31, v0
    v_lshlrev_b32 v3, 2, v3
    s_waitcnt lgkmcnt(0)
    """)
    srd_from_ptr(k, 12, 10, 2 * MB, off=WS_KVP)
    srd_from_ptr(k, 16, 10, 64 * 1024, off=WS_ZP)
    srd_from_ptr(k, 24, 10, 4 * MB, off=WS_PQ_P)
    srd_from_ptr(k, 28, 10, 4 * MB, off=WS_O_P)
    k(f"""
    s_lshl_b32 s23, s20, 2
    s_lshl_b32 s23, s23, 5
    s_add_u32 s23, s23, s21
    s_lshl_b32 s32, s23, 7
    s_lshl_b32 s23, s23, 12
    """)
    for r in range(4):
        for iq in range(4):
            k(f"buffer_load_dwordx4 v[{16 + 16 * r + 4 * iq}:{19 + 16 * r + 4 * iq}], v2, s[12:15], s23 offen offset:{iq * 1024}")
        k(f"buffer_load_dword v{96 + r}, v3, s[16:19], s32 offen")
        k(f"s_add_u32 s23, s23, {32 * 4096}")
        k(f"s_add_u32 s32, s32, {32 * 128}")
    PQF = 104
    k(f"""
    s_lshl_b32 s33, s22, 3
    s_lshl_b32 s34, s20, 1
    s_add_u32 s33, s33, s34
    s_lshl_b32 s33, s33, 16
    s_lshl_b32 s34, s21, 11
    s_add_u32 s33, s33, s34
    s_add_u32 s34, s33, 65536
    """)
    for t in range(2):
        for blk in range(2):
            r = PQF + 8 * t + 4 * blk
            k(f"buffer_load_dwordx4 v[{r}:{r + 3}], v2, s[24:27], s{33 + t} offen offset:{blk * 1024}")
    k("s_waitcnt vmcnt(4)")
    for i in range(16):
        k(f"v_add_f32 v{16 + i}, v{16 + i}, v{32 + i}")
        k(f"v_add_f32 v{48 + i}, v{48 + i}, v{64 + i}")
        k(f"v_add_f32 v{16 + i}, v{16 + i}, v{48 + i}")
    k(f"""
    v_add_f32 v96, v96, v97
    v_add_f32 v98, v98, v99
    v_add_f32 v96, v96, v98
    s_lshl_b32 s35, s20, 12
    v_add_u32 v4, s35, v2
    s_lshl_b32 s35, s20, 7
    v_add_u32 v5, s35, v3
    """)
    for iq in range(4):
        k(f"ds_write_b128 v4, v[{16 + 4 * iq}:{19 + 4 * iq}] offset:{iq * 1024}")
    k(f"""
    ds_write_b32 v5, v96 offset:16384
    s_waitcnt lgkmcnt(0)
    s_barrier
    """)
    for w in range(4):
        for iq in range(4):
            k(f"ds_read_b128 v[{16 + 16 * w + 4 * iq}:{19 + 16 * w + 4 * iq}], v2 offset:{w * 4096 + iq * 1024}")
        k(f"ds_read_b32 v{96 + w}, v3 offset:{16384 + w * 128}")
    k("s_waitcnt lgkmcnt(0)")
    KVA, ZA = 80, 88
    for i in range(16):
        k(f"v_add_f32 v{16 + i}, v{16 + i}, v{32 + i}")
        k(f"v_add_f32 v{48 + i}, v{48 + i}, v{64 + i}")
        k(f"v_add_f32 v{16 + i}, v{16 + i}, v{48 + i}")
    for q in range(8):
        k(f"v_cvt_pk_bf16_f32 v{KVA + q}, v{16 + 2 * q}, v{17 + 2 * q}")
    k(f"""
    v_add_f32 v96, v96, v97
    v_add_f32 v98, v98, v99
    v_add_f32 v96, v96, v98
    v_cvt_pk_bf16_f32 v96, v96, v96
    v_lshlrev_b32 v96, 16, v96
    ds_write_b32 v5, v96 offset:17408
    v_lshrrev_b32 v6, 5, v0
    v_lshlrev_b32 v6, 4, v6
    s_lshl_b32 s35, s20, 7
    v_add_u32 v6, s35, v6
    s_waitcnt lgkmcnt(0)
    """)
    for blk in range(2):
        for jq in range(2):
            r = 16 + 8 * blk + 4 * jq
            k(f"ds_read_b128 v[{r}:{r + 3}], v6 offset:{17408 + (16 * blk + 8 * jq) * 4}")
    k("s_waitcnt lgkmcnt(0)")
    for blk in range(2):
        for q in range(4):
            k(f"v_cvt_pk_bf16_f32 v{ZA + 4 * blk + q}, v{16 + 8 * blk + 2 * q}, v{17 + 8 * blk + 2 * q}")
    k("s_waitcnt vmcnt(0)")
    k("s_nop 1")
    NUM, DEN = 16, 48
    for t in range(2):
        num, den = NUM + 16 * t, DEN + 16 * t
        for blk in range(2):
            p = PQF + 8 * t + 4 * blk
            c = "0" if blk == 0 else f"v[{num}:{num + 15}]"
            k(f"v_mfma_f32_32x32x16_bf16 v[{num}:{num + 15}], v[{KVA + 4 * blk}:{KVA + 4 * blk + 3}], v[{p}:{p + 3}], {c}")
            c = "0" if blk == 0 else f"v[{den}:{den + 15}]"
            k(f"v_mfma_f32_32x32x16_bf16 v[{den}:{den + 15}], v[{ZA + 4 * blk}:{ZA + 4 * blk + 3}], v[{p}:{p + 3}], {c}")
    k("s_nop 15")
    T = 8
    OUTR = 120
    for t in range(2):
        num, den = NUM + 16 * t, DEN + 16 * t
        k(f"""
        v_cvt_pk_bf16_f32 v{T}, v{den}, v{den}
        v_lshlrev_b32 v{T}, 16, v{T}
        v_add_f32 v{T}, 0x{F32_1EM6:x}, v{T}
        v_cvt_pk_bf16_f32 v{T}, v{T}, v{T}
        v_lshlrev_b32 v{T}, 16, v{T}
        v_rcp_f32 v{T + 1}, v{T}
        s_nop 0
        """)
        for q in range(8):
            k(f"""
            v_cvt_pk_bf16_f32 v{T + 2}, v{num + 2 * q}, v{num + 2 * q + 1}
            v_and_b32 v{T + 3}, 0xffff0000, v{T + 2}
            v_lshlrev_b32 v{T + 2}, 16, v{T + 2}
            """)
            div_bf16_pair(k, T + 2, T + 3, T, T + 1, OUTR + 8 * t + q, T + 4)
        for blk in range(2):
            r = OUTR + 8 * t + 4 * blk
            k(f"buffer_store_dwordx4 v[{r}:{r + 3}], v2, s[28:31], s{33 + t} offen offset:{blk * 1024}")
    k(f"{EX}:")
    return k.text(vgpr=136, sgpr=40)


K3_STAGE = 24576
K3_NS = 4


def gen_wo(layer):
    k = K(f"wo{layer}_kernel")
    EX = k.label("exit")
    LOOP = k.label("loop")
    X, Y = 16, 28
    ACC = 48
    A0, A1 = ACC, ACC + 16
    vlane, vwoff, vrdA, vrdB, vrdAc, vrdBc = 0, 1, 2, 3, 4, 5
    TOFF = 40
    k(f"""
    s_cmp_ge_u32 s2, 256
    s_cbranch_scc1 {EX}
    s_load_dwordx2 s[10:11], s[0:1], {KA_WS}
    s_load_dwordx2 s[8:9], s[0:1], {KA_AX}
    v_lshrrev_b32 v1, 6, v0
    v_and_b32 v0, 63, v0
    s_nop 0
    v_readfirstlane_b32 s20, v1
    s_and_b32 s21, s2, 7
    s_lshr_b32 s22, s2, 3
    s_and_b32 s23, s21, 1
    s_lshl_b32 s23, s23, 3
    s_and_b32 s24, s22, 7
    s_add_u32 s23, s23, s24
    s_lshr_b32 s24, s21, 1
    s_lshl_b32 s24, s24, 2
    s_lshr_b32 s25, s22, 3
    s_add_u32 s24, s24, s25
    s_lshr_b32 s25, s20, 1
    s_and_b32 s26, s20, 1
    s_waitcnt lgkmcnt(0)
    """)
    srd_from_ptr(k, 12, 10, 0x1400000)
    k(f"s_lshl_b32 s27, s23, 18")
    for t in range(4):
        k(f"s_add_u32 s{TOFF + t}, s27, 0x{WS_O_P + t * 65536:x}")
    k(f"s_lshl_b32 s27, s24, 17")
    for u in range(2):
        k(f"s_add_u32 s{TOFF + 4 + u}, s27, 0x{WS_WO_P + u * 65536:x}")
    k(f"""
    s_lshl_b32 s28, s20, 10
    v_lshlrev_b32 v{vwoff}, 4, v{vlane}
    v_add_u32 v{vwoff}, s28, v{vwoff}
    v_lshlrev_b32 v{vrdA}, 4, v{vlane}
    s_lshl_b32 s29, s25, 13
    v_add_u32 v{vrdA}, s29, v{vrdA}
    s_lshl_b32 s29, s26, 12
    s_add_u32 s29, s29, 16384
    v_lshlrev_b32 v{vrdB}, 4, v{vlane}
    v_add_u32 v{vrdB}, s29, v{vrdB}
    """)

    def reads(dst, s):
        return [f"ds_read_b128 v[{dst}:{dst + 3}], v{vrdAc} offset:{s * 1024}",
                f"ds_read_b128 v[{dst + 4}:{dst + 7}], v{vrdAc} offset:{4096 + s * 1024}",
                f"ds_read_b128 v[{dst + 8}:{dst + 11}], v{vrdBc} offset:{s * 1024}"]

    def mfma_list(f):
        a0, a1, b = f, f + 4, f + 8
        return [f"v_mfma_f32_32x32x16_bf16 v[{acc}:{acc + 15}], v[{b}:{b + 3}], v[{B}:{B + 3}], v[{acc}:{acc + 15}]"
                for (acc, B) in ((A0, a0), (A1, a1))]

    NS = K3_NS
    LOOP, iteration = gemm_main(k, 6, NS, K3_STAGE, reads, mfma_list, 3, TOFF, vwoff, vrdA, vrdB, vrdAc, vrdBc)
    for t in range(6):
        k(f"s_sub_u32 s{TOFF + t}, s{TOFF + t}, 4096")
    k("s_mov_b32 s34, s28")
    for st in range(NS - 1):
        for t in range(6):
            for ins in [f"s_add_u32 m0, s34, 0x{t * 4096:x}",
                        f"s_add_u32 s{TOFF + t}, s{TOFF + t}, 4096",
                        f"buffer_load_dwordx4 v{vwoff}, s[12:15], s{TOFF + t} offen lds"]:
                k(ins)
        k(f"s_add_u32 s34, s34, {K3_STAGE}")
    for i in range(32):
        k(f"v_mov_b32 v{ACC + i}, 0")
    k(f"""
    s_mov_b32 s32, 0
    s_mov_b32 s33, 0
    s_waitcnt vmcnt({6 * (NS - 2)})
    s_barrier
    v_add_u32 v{vrdAc}, s33, v{vrdA}
    v_add_u32 v{vrdBc}, s33, v{vrdB}
    """)
    for r in reads(X, 0):
        k(r)
    nmain = 16 - (NS - 1)
    k(f"{LOOP}:")
    iteration(X, Y, True, 6 * (NS - 3) + 5, False)
    k(f"""
    s_add_u32 s32, s32, 1
    s_cmp_lt_u32 s32, {nmain}
    s_cbranch_scc1 {LOOP}
    """)
    for kt in range(nmain, 16):
        iteration(X, Y, False, 6 * (15 - kt - 1), kt == 15)
    if layer == 0:
        srd_from_ptr(k, 16, 8, S * D * 2)
    else:
        srd_from_ptr(k, 16, 10, 4 * MB, off=WS_X2)
    srd_from_ptr(k, 36, 10, 4 * MB, off=WS_X1)
    k(f"""
    s_lshl_b32 s27, s23, 2
    s_lshl_b32 s29, s25, 1
    s_add_u32 s27, s27, s29
    s_lshl_b32 s27, s27, 16
    s_lshl_b32 s29, s24, 7
    s_lshl_b32 s30, s26, 6
    s_add_u32 s29, s29, s30
    s_add_u32 s27, s27, s29
    s_add_u32 s28, s27, 65536
    v_and_b32 v6, 31, v{vlane}
    v_lshlrev_b32 v6, 11, v6
    v_lshrrev_b32 v7, 5, v{vlane}
    v_lshl_add_u32 v6, v7, 5, v6
    """)
    XR = 80
    for t in range(2):
        for hh in range(2):
            r = XR + 8 * t + 4 * hh
            k(f"buffer_load_dwordx4 v[{r}:{r + 3}], v6, s[16:19], s{27 + t} offen offset:{hh * 16}")
    k("s_nop 7")
    k("s_waitcnt vmcnt(0)")
    OR_ = 96
    for t, acc in enumerate((A0, A1)):
        for q in range(8):
            x = XR + 8 * t + q
            k(f"""
            v_cvt_pk_bf16_f32 v8, v{acc + 2 * q}, v{acc + 2 * q + 1}
            v_lshlrev_b32 v9, 16, v8
            v_and_b32 v8, 0xffff0000, v8
            v_lshlrev_b32 v10, 16, v{x}
            v_and_b32 v11, 0xffff0000, v{x}
            v_add_f32 v9, v9, v10
            v_add_f32 v8, v8, v11
            v_cvt_pk_bf16_f32 v{OR_ + 8 * t + q}, v9, v8
            """)
        for hh in range(2):
            r = OR_ + 8 * t + 4 * hh
            k(f"buffer_store_dwordx4 v[{r}:{r + 3}], v6, s[36:39], s{27 + t} offen offset:{hh * 16}")
    k(f"{EX}:")
    return k.text(vgpr=112, sgpr=56)


def gen_ln2(layer):
    k = K(f"ln2_{layer}_kernel")
    EX = k.label("exit")
    X, WR, XN, Fv, T = 8, 16, 24, 32, 48
    k(f"""
    s_cmp_ge_u32 s2, 256
    s_cbranch_scc1 {EX}
    s_load_dwordx2 s[10:11], s[0:1], {KA_WS}
    s_load_dwordx2 s[8:9], s[0:1], {KA_WR}
    s_load_dwordx2 s[6:7], s[0:1], {KA_OUT}
    v_lshrrev_b32 v1, 6, v0
    v_and_b32 v0, 63, v0
    s_nop 0
    v_readfirstlane_b32 s20, v1
    s_lshl_b32 s21, s2, 3
    s_add_u32 s22, s21, s20
    s_lshl_b32 s23, s22, 11
    v_lshlrev_b32 v2, 5, v0
    s_waitcnt lgkmcnt(0)
    """)
    srd_from_ptr(k, 12, 10, 4 * MB, off=WS_X1)
    srd_from_ptr(k, 16, 8, D * 2)
    srd_from_ptr(k, 24, 10, 4 * MB, off=WS_XN2)
    srd_from_ptr(k, 28, 10, 8192, off=WS_R)
    if layer == 0:
        srd_from_ptr(k, 32, 10, 4 * MB, off=WS_X2)
        srd_from_ptr(k, 36, 10, 4 * MB, off=WS_XN_P)
    else:
        srd_from_ptr(k, 32, 6, S * D * 2)
    k(f"""
    buffer_load_dwordx4 v[{X}:{X + 3}], v2, s[12:15], s23 offen
    buffer_load_dwordx4 v[{X + 4}:{X + 7}], v2, s[12:15], s23 offen offset:16
    buffer_load_dwordx4 v[{WR}:{WR + 3}], v2, s[16:19], 0 offen
    buffer_load_dwordx4 v[{WR + 4}:{WR + 7}], v2, s[16:19], 0 offen offset:16
    s_waitcnt vmcnt(2)
    """)
    unpack8(k, X, Fv)
    ln_row(k, Fv, XN, T, 40)
    k(f"""
    buffer_store_dwordx4 v[{XN}:{XN + 3}], v2, s[24:27], s23 offen
    buffer_store_dwordx4 v[{XN + 4}:{XN + 7}], v2, s[24:27], s23 offen offset:16
    s_waitcnt vmcnt(2)
    """)
    a_, b_, c_, d_, s0, s1 = T, T + 1, T + 2, T + 3, T + 4, T + 5
    k(f"v_mov_b32 v{s0}, 0")
    k(f"v_mov_b32 v{s1}, 0")
    for q in range(8):
        k(f"""
        v_lshlrev_b32 v{a_}, 16, v{XN + q}
        v_and_b32 v{b_}, 0xffff0000, v{XN + q}
        v_lshlrev_b32 v{c_}, 16, v{WR + q}
        v_and_b32 v{d_}, 0xffff0000, v{WR + q}
        v_fmac_f32 v{s0}, v{a_}, v{c_}
        v_fmac_f32 v{s1}, v{b_}, v{d_}
        v_add_f32 v{Fv + 2 * q}, v{Fv + 2 * q}, v{a_}
        v_add_f32 v{Fv + 2 * q + 1}, v{Fv + 2 * q + 1}, v{b_}
        v_cvt_pk_bf16_f32 v{X + q}, v{Fv + 2 * q}, v{Fv + 2 * q + 1}
        """)
    k(f"""
    buffer_store_dwordx4 v[{X}:{X + 3}], v2, s[32:35], s23 offen
    buffer_store_dwordx4 v[{X + 4}:{X + 7}], v2, s[32:35], s23 offen offset:16
    v_add_f32 v{s0}, v{s0}, v{s1}
    """)
    wave_sum(k, s0, 40)
    k(f"""
    v_cvt_pk_bf16_f32 v{s0}, v{s0}, v{s0}
    v_and_b32 v{a_}, 0xffff, v{s0}
    v_xor_b32 v{b_}, 0xffff, v{a_}
    v_or_b32 v{c_}, 0x8000, v{a_}
    v_cmp_lt_u32 vcc, 0x7fff, v{a_}
    s_sub_u32 s44, 0xffff, s22
    s_lshl_b32 s45, s22, 2
    v_cndmask_b32 v{a_}, v{c_}, v{b_}, vcc
    v_lshl_or_b32 v{a_}, v{a_}, 16, s44
    v_mov_b32 v{b_}, 0
    v_cmp_eq_u32 vcc, 0, v0
    s_and_saveexec_b64 s[46:47], vcc
    buffer_store_dword v{a_}, v{b_}, s[28:31], s45 offen
    s_mov_b64 exec, s[46:47]
    """)
    if layer == 0:
        unpack8(k, X, Fv)
        ln_row(k, Fv, XN, T, 40)
        store_rows_packed(k, XN, 36, 20, 21, 3, 44)
    k(f"{EX}:")
    return k.text(vgpr=64, sgpr=56)


def row16_max(k, v):
    for ctl in ("quad_perm:[1,0,3,2]", "quad_perm:[2,3,0,1]", "row_half_mirror", "row_mirror"):
        k("s_nop 1")
        k(f"v_max_u32_dpp v{v}, v{v}, v{v} {ctl} row_mask:0xf bank_mask:0xf")


def topk8(k, KEYS, T, SSEL, srd_r, lds_cand, lds_sel):
    m, cand, ad = T, T + 1, T + 2
    k(f"""
    v_mov_b32 v{cand}, 0
    s_waitcnt vmcnt(63)
    """)
    for rnd in range(8):
        k(f"v_max_u32 v{m}, v{KEYS}, v{KEYS + 1}")
        for j in range(2, 8):
            k(f"v_max_u32 v{m}, v{m}, v{KEYS + j}")
        row16_max(k, m)
        k(f"""
        s_nop 1
        v_readlane_b32 s60, v{m}, 0
        v_readlane_b32 s61, v{m}, 16
        v_readlane_b32 s62, v{m}, 32
        v_readlane_b32 s63, v{m}, 48
        s_max_u32 s60, s60, s61
        s_max_u32 s62, s62, s63
        s_max_u32 s60, s60, s62
        v_writelane_b32 v{cand}, s60, {rnd}
        """)
        for j in range(8):
            k(f"v_cmp_ne_u32 vcc, s60, v{KEYS + j}")
            k(f"s_nop 1")
            k(f"v_cndmask_b32 v{KEYS + j}, 0, v{KEYS + j}, vcc")
    k(f"""
    s_lshl_b32 s60, s20, 5
    v_lshlrev_b32 v{ad}, 2, v0
    v_add_u32 v{ad}, s60, v{ad}
    v_cmp_gt_u32 vcc, 8, v0
    s_and_saveexec_b64 s[62:63], vcc
    ds_write_b32 v{ad}, v{cand} offset:{lds_cand}
    s_mov_b64 exec, s[62:63]
    s_waitcnt lgkmcnt(0)
    s_barrier
    v_and_b32 v{ad}, 31, v0
    v_lshlrev_b32 v{ad}, 2, v{ad}
    ds_read_b32 v{cand}, v{ad} offset:{lds_cand}
    s_waitcnt lgkmcnt(0)
    """)
    for rnd in range(8):
        k(f"v_mov_b32 v{m}, v{cand}")
        row16_max(k, m)
        k(f"""
        s_nop 1
        v_readlane_b32 s60, v{m}, 0
        v_readlane_b32 s61, v{m}, 16
        s_max_u32 s{SSEL + rnd}, s60, s61
        v_cmp_ne_u32 vcc, s{SSEL + rnd}, v{cand}
        s_nop 1
        v_cndmask_b32 v{cand}, 0, v{cand}, vcc
        """)


def gen_ffn1():
    k = K("ffn1_kernel")
    EX = k.label("exit")
    WG_, WU_ = 64, 96
    ACC = 128
    XV = 160
    KEYS, T = 8, 4
    SSEL = 64
    LDS_CAND, LDS_SEL, LDS_XS, LDS_RED = 0, 128, 512, 8192
    k(f"""
    s_cmp_ge_u32 s2, 224
    s_cbranch_scc1 {EX}
    s_load_dwordx2 s[10:11], s[0:1], {KA_WS}
    s_load_dwordx2 s[4:5], s[0:1], {KA_WG}
    s_load_dwordx2 s[6:7], s[0:1], {KA_WU}
    v_lshrrev_b32 v1, 6, v0
    v_mov_b32 v3, v0
    v_and_b32 v0, 63, v0
    s_nop 0
    v_readfirstlane_b32 s20, v1
    s_mul_i32 s22, s2, 9363
    s_lshr_b32 s22, s22, 18
    s_mul_i32 s21, s22, 28
    s_sub_u32 s21, s2, s21
    s_waitcnt lgkmcnt(0)
    """)
    srd_from_ptr(k, 12, 4, D * F * 2)
    srd_from_ptr(k, 16, 6, D * F * 2)
    srd_from_ptr(k, 24, 10, 8192, off=WS_R)
    srd_from_ptr(k, 28, 10, 4 * MB, off=WS_XN2)
    srd_from_ptr(k, 32, 10, 2 * MB, off=WS_GU_P)
    srd_from_ptr(k, 36, 10, 32, off=WS_SEL)
    k(f"""
    s_lshl_b32 s23, s22, 7
    s_lshl_b32 s40, s20, 5
    s_add_u32 s23, s23, s40
    s_mul_i32 s23, s23, 7168
    s_lshl_b32 s40, s21, 8
    s_add_u32 s23, s23, s40
    v_lshlrev_b32 v2, 2, v0
    s_lshl_b32 s60, s20, 11
    v_lshlrev_b32 v{T + 2}, 5, v0
    buffer_load_dwordx4 v[{KEYS}:{KEYS + 3}], v{T + 2}, s[24:27], s60 offen
    buffer_load_dwordx4 v[{KEYS + 4}:{KEYS + 7}], v{T + 2}, s[24:27], s60 offen offset:16
    """)
    for i in range(32):
        k(f"buffer_load_dword v{WG_ + i}, v2, s[12:15], s23 offen")
        k(f"buffer_load_dword v{WU_ + i}, v2, s[16:19], s23 offen")
        k(f"s_add_u32 s23, s23, 7168")
    if "notopk" in EXP:
        for r in range(8):
            k(f"s_mov_b32 s{SSEL + r}, {0xffff - r}")
    else:
        topk8(k, KEYS, T, SSEL, 24, LDS_CAND, LDS_SEL)
    k(f"v_mov_b32 v{T}, 0")
    for r in range(8):
        k(f"v_writelane_b32 v{T}, s{SSEL + r}, {r}")
    k(f"""
    v_lshlrev_b32 v{T + 1}, 2, v0
    s_lshl_b32 s40, s20, 5
    v_add_u32 v{T + 2}, s40, v{T + 1}
    v_cmp_gt_u32 vcc, 8, v0
    s_and_saveexec_b64 s[62:63], vcc
    ds_write_b32 v{T + 2}, v{T} offset:{LDS_SEL}
    s_or_b32 s41, s2, s20
    s_cmp_eq_u32 s41, 0
    s_cbranch_scc0 {k.name}_nosel
    buffer_store_dword v{T}, v{T + 1}, s[36:39], 0 offen
    {k.name}_nosel:
    s_mov_b64 exec, s[62:63]
    s_waitcnt lgkmcnt(0)
    v_lshrrev_b32 v{T + 1}, 5, v3
    v_lshlrev_b32 v{T + 1}, 2, v{T + 1}
    v_add_u32 v{T + 2}, s40, v{T + 1}
    ds_read_b32 v{T}, v{T + 2} offset:{LDS_SEL}
    s_waitcnt lgkmcnt(0)
    v_and_b32 v{T}, 0xffff, v{T}
    v_sub_u32 v{T}, 0xffff, v{T}
    v_lshlrev_b32 v{T}, 11, v{T}
    v_and_b32 v{T + 2}, 31, v3
    v_lshl_add_u32 v{T}, v{T + 2}, 3, v{T}
    s_lshl_b32 s40, s22, 8
    buffer_load_dwordx2 v[{KEYS}:{KEYS + 1}], v{T}, s[28:31], s40 offen
    v_lshl_add_u32 v{T + 1}, v{T + 2}, 7, v{T + 1}
    s_waitcnt vmcnt(0)
    v_lshlrev_b32 v{T}, 16, v{KEYS}
    v_and_b32 v{T + 2}, 0xffff0000, v{KEYS}
    ds_write_b32 v{T + 1}, v{T} offset:{LDS_XS}
    ds_write_b32 v{T + 1}, v{T + 2} offset:{LDS_XS + 32}
    v_lshlrev_b32 v{T}, 16, v{KEYS + 1}
    v_and_b32 v{T + 2}, 0xffff0000, v{KEYS + 1}
    ds_write_b32 v{T + 1}, v{T} offset:{LDS_XS + 64}
    ds_write_b32 v{T + 1}, v{T + 2} offset:{LDS_XS + 96}
    s_waitcnt lgkmcnt(0)
    s_barrier
    s_lshl_b32 s40, s20, 10
    v_mov_b32 v{T}, s40
    """)
    for i in range(32):
        k(f"v_mov_b32 v{ACC + i}, 0")
    k(f"ds_read_b128 v[{XV}:{XV + 3}], v{T} offset:{LDS_XS}")
    k(f"ds_read_b128 v[{XV + 4}:{XV + 7}], v{T} offset:{LDS_XS + 16}")
    for i in range(32):
        xc = XV + 8 * (i & 1)
        xn_ = XV + 8 * ((i + 1) & 1)
        k("s_waitcnt lgkmcnt(0)")
        if i < 31:
            k(f"ds_read_b128 v[{xn_}:{xn_ + 3}], v{T} offset:{LDS_XS + 32 * (i + 1)}")
            k(f"ds_read_b128 v[{xn_ + 4}:{xn_ + 7}], v{T} offset:{LDS_XS + 32 * (i + 1) + 16}")
        k(f"v_lshlrev_b32 v{T + 1}, 16, v{WG_ + i}")
        k(f"v_and_b32 v{T + 2}, 0xffff0000, v{WG_ + i}")
        k(f"v_lshlrev_b32 v{T + 3}, 16, v{WU_ + i}")
        k(f"v_and_b32 v{KEYS}, 0xffff0000, v{WU_ + i}")
        for t in range(8):
            k(f"v_fmac_f32 v{ACC + 2 * t}, v{xc + t}, v{T + 1}")
            k(f"v_fmac_f32 v{ACC + 2 * t + 1}, v{xc + t}, v{T + 2}")
            k(f"v_fmac_f32 v{ACC + 16 + 2 * t}, v{xc + t}, v{T + 3}")
            k(f"v_fmac_f32 v{ACC + 16 + 2 * t + 1}, v{xc + t}, v{KEYS}")
    k(f"""
    s_lshl_b32 s40, s20, 13
    v_lshlrev_b32 v{T}, 2, v0
    v_add_u32 v{T + 1}, s40, v{T}
    """)
    for a in range(32):
        k(f"ds_write_b32 v{T + 1}, v{ACC + a} offset:{LDS_RED + a * 256}")
    k(f"""
    s_waitcnt lgkmcnt(0)
    s_barrier
    s_lshl_b32 s40, s20, 11
    v_add_u32 v{T + 1}, s40, v{T}
    """)
    for a in range(8):
        for w in range(4):
            k(f"ds_read_b32 v{WG_ + 4 * a + w}, v{T + 1} offset:{LDS_RED + w * 8192 + a * 256}")
    k("s_waitcnt lgkmcnt(0)")
    for a in range(8):
        k(f"v_add_f32 v{ACC + a}, v{WG_ + 4 * a}, v{WG_ + 4 * a + 1}")
        k(f"v_add_f32 v{WG_ + 4 * a + 2}, v{WG_ + 4 * a + 2}, v{WG_ + 4 * a + 3}")
        k(f"v_add_f32 v{ACC + a}, v{ACC + a}, v{WG_ + 4 * a + 2}")
    k(f"""
    s_lshl_b32 s40, s22, 4
    s_lshl_b32 s41, s20, 2
    s_add_u32 s40, s40, s41
    s_mul_i32 s40, s40, {F * 4}
    s_lshl_b32 s41, s21, 9
    s_add_u32 s40, s40, s41
    v_lshlrev_b32 v{T}, 3, v0
    """)
    for q in range(4):
        k(f"buffer_store_dwordx2 v[{ACC + 2 * q}:{ACC + 2 * q + 1}], v{T}, s[32:35], s40 offen")
        k(f"s_add_u32 s40, s40, {F * 4}")
    k(f"{EX}:")
    return k.text(vgpr=176, sgpr=80)


def gen_ffn2():
    k = K("ffn2_kernel")
    EX = k.label("exit")
    WD_ = 64
    ACC = 128
    XV = 160
    T = 4
    LDS_XS, LDS_RED = 0, 8192
    k(f"""
    s_cmp_ge_u32 s2, 224
    s_cbranch_scc1 {EX}
    s_load_dwordx2 s[10:11], s[0:1], {KA_WS}
    s_load_dwordx2 s[4:5], s[0:1], {KA_WD}
    v_lshrrev_b32 v1, 6, v0
    v_mov_b32 v3, v0
    v_and_b32 v0, 63, v0
    s_nop 0
    v_readfirstlane_b32 s20, v1
    s_and_b32 s21, s2, 7
    s_lshr_b32 s22, s2, 3
    s_waitcnt lgkmcnt(0)
    """)
    srd_from_ptr(k, 12, 4, F * D * 2)
    srd_from_ptr(k, 32, 10, 2 * MB, off=WS_GU_P)
    srd_from_ptr(k, 36, 10, MB, off=WS_Y_P)
    k(f"""
    s_lshl_b32 s23, s22, 7
    s_lshl_b32 s40, s20, 5
    s_add_u32 s23, s23, s40
    s_lshl_b32 s23, s23, 11
    s_lshl_b32 s40, s21, 8
    s_add_u32 s23, s23, s40
    v_lshlrev_b32 v2, 2, v0
    """)
    k(f"""
    v_lshrrev_b32 v{T}, 5, v3
    v_mul_u32_u24 v{T + 1}, {F * 4}, v{T}
    v_and_b32 v{T + 2}, 31, v3
    v_lshl_add_u32 v{T + 1}, v{T + 2}, 4, v{T + 1}
    s_lshl_b32 s40, s22, 9
    """)
    P = 96
    for kc in range(8):
        for mat in range(2):
            r = P + 8 * kc + 4 * mat
            k(f"buffer_load_dwordx4 v[{r}:{r + 3}], v{T + 1}, s[32:35], s40 offen")
            k(f"s_add_u32 s40, s40, {8 * F * 4}")
    for i in range(32):
        k(f"buffer_load_dword v{WD_ + i}, v2, s[12:15], s23 offen offset:{(i & 1) * 2048}")
        if i & 1:
            k(f"s_add_u32 s23, s23, 4096")
    k("s_waitcnt vmcnt(32)")
    for j in range(8):
        for kc in range(1, 8):
            k(f"v_add_f32 v{P + j}, v{P + j}, v{P + 8 * kc + j}")
    k(f"""
    v_lshlrev_b32 v{T}, 2, v{T}
    v_lshl_add_u32 v{T}, v{T + 2}, 7, v{T}
    """)
    a, b, c, d = T + 1, T + 2, T + 3, XV
    for j in range(4):
        g, u = P + j, P + 4 + j
        k(f"""
        v_cvt_pk_bf16_f32 v{a}, v{g}, v{u}
        v_lshlrev_b32 v{g}, 16, v{a}
        v_and_b32 v{u}, 0xffff0000, v{a}
        v_mul_f32 v{a}, 0x{F32_LOG2E:x}, v{g}
        v_exp_f32 v{a}, -v{a}
        s_nop 0
        v_add_f32 v{a}, 1.0, v{a}
        v_rcp_f32 v{b}, v{a}
        s_nop 0
        v_mul_f32 v{c}, v{g}, v{b}
        v_fma_f32 v{d}, -v{c}, v{a}, v{g}
        v_fma_f32 v{c}, v{d}, v{b}, v{c}
        v_cvt_pk_bf16_f32 v{c}, v{c}, v{c}
        v_lshlrev_b32 v{c}, 16, v{c}
        v_mul_f32 v{c}, v{c}, v{u}
        v_cvt_pk_bf16_f32 v{c}, v{c}, v{c}
        v_lshlrev_b32 v{c}, 16, v{c}
        ds_write_b32 v{T}, v{c} offset:{LDS_XS + 32 * j}
        """)
    k(f"""
    s_waitcnt lgkmcnt(0)
    s_barrier
    s_lshl_b32 s40, s20, 10
    v_mov_b32 v{T}, s40
    """)
    for i in range(16):
        k(f"v_mov_b32 v{ACC + i}, 0")
    k("s_waitcnt vmcnt(0)")
    k(f"ds_read_b128 v[{XV}:{XV + 3}], v{T} offset:{LDS_XS}")
    k(f"ds_read_b128 v[{XV + 4}:{XV + 7}], v{T} offset:{LDS_XS + 16}")
    for i in range(32):
        xc = XV + 8 * (i & 1)
        xn_ = XV + 8 * ((i + 1) & 1)
        k("s_waitcnt lgkmcnt(0)")
        if i < 31:
            k(f"ds_read_b128 v[{xn_}:{xn_ + 3}], v{T} offset:{LDS_XS + 32 * (i + 1)}")
            k(f"ds_read_b128 v[{xn_ + 4}:{xn_ + 7}], v{T} offset:{LDS_XS + 32 * (i + 1) + 16}")
        k(f"v_lshlrev_b32 v{T + 1}, 16, v{WD_ + i}")
        k(f"v_and_b32 v{T + 2}, 0xffff0000, v{WD_ + i}")
        for t in range(8):
            k(f"v_fmac_f32 v{ACC + 2 * t}, v{xc + t}, v{T + 1}")
            k(f"v_fmac_f32 v{ACC + 2 * t + 1}, v{xc + t}, v{T + 2}")
    k(f"""
    s_lshl_b32 s40, s20, 12
    v_lshlrev_b32 v{T}, 2, v0
    v_add_u32 v{T + 1}, s40, v{T}
    """)
    for a_ in range(16):
        k(f"ds_write_b32 v{T + 1}, v{ACC + a_} offset:{LDS_RED + a_ * 256}")
    k(f"""
    s_waitcnt lgkmcnt(0)
    s_barrier
    s_lshl_b32 s40, s20, 10
    v_add_u32 v{T + 1}, s40, v{T}
    """)
    for a_ in range(4):
        for w in range(4):
            k(f"ds_read_b32 v{WD_ + 4 * a_ + w}, v{T + 1} offset:{LDS_RED + w * 4096 + a_ * 256}")
    k("s_waitcnt lgkmcnt(0)")
    for a_ in range(4):
        k(f"v_add_f32 v{ACC + a_}, v{WD_ + 4 * a_}, v{WD_ + 4 * a_ + 1}")
        k(f"v_add_f32 v{WD_ + 4 * a_ + 2}, v{WD_ + 4 * a_ + 2}, v{WD_ + 4 * a_ + 3}")
        k(f"v_add_f32 v{ACC + a_}, v{ACC + a_}, v{WD_ + 4 * a_ + 2}")
    k(f"""
    s_lshl_b32 s40, s22, 3
    s_lshl_b32 s41, s20, 1
    s_add_u32 s40, s40, s41
    s_lshl_b32 s40, s40, 12
    s_lshl_b32 s41, s21, 9
    s_add_u32 s40, s40, s41
    v_lshlrev_b32 v{T}, 3, v0
    buffer_store_dwordx2 v[{ACC}:{ACC + 1}], v{T}, s[36:39], s40 offen
    s_add_u32 s40, s40, 4096
    buffer_store_dwordx2 v[{ACC + 2}:{ACC + 3}], v{T}, s[36:39], s40 offen
    """)
    k(f"{EX}:")
    return k.text(vgpr=176, sgpr=80)


def gen_fix(layer):
    k = K(f"fix{layer}_kernel")
    EX = k.label("exit")
    P = 16
    k(f"""
    s_cmp_ge_u32 s2, 8
    s_cbranch_scc1 {EX}
    s_load_dwordx2 s[10:11], s[0:1], {KA_WS}
    s_load_dwordx2 s[6:7], s[0:1], {KA_OUT}
    s_waitcnt lgkmcnt(0)
    """)
    srd_from_ptr(k, 12, 10, MB, off=WS_Y_P)
    srd_from_ptr(k, 16, 10, 4 * MB, off=WS_XN2)
    srd_from_ptr(k, 24, 10, 4 * MB, off=WS_X1)
    if layer == 0:
        srd_from_ptr(k, 28, 10, 4 * MB, off=WS_X2)
        srd_from_ptr(k, 32, 10, 4 * MB, off=WS_XN_P)
    else:
        srd_from_ptr(k, 28, 6, S * D * 2)
    k(f"""
    s_add_u32 s36, s10, 0x{WS_SEL:x}
    s_addc_u32 s37, s11, 0
    s_lshl_b32 s21, s2, 2
    s_load_dword s22, s[36:37], s21
    v_lshlrev_b32 v1, 4, v0
    s_lshl_b32 s23, s2, 12
    """)
    for kc in range(28):
        k(f"buffer_load_dwordx4 v[{P + 4 * kc}:{P + 4 * kc + 3}], v1, s[12:15], s23 offen")
        k(f"s_add_u32 s23, s23, {8 * 4096}")
    k(f"""
    s_waitcnt lgkmcnt(0)
    s_and_b32 s38, s22, 0xffff
    """)
    k(f"""
    s_sub_u32 s38, 0xffff, s38
    s_lshl_b32 s39, s38, 11
    v_lshlrev_b32 v2, 3, v0
    buffer_load_dwordx2 v[4:5], v2, s[16:19], s39 offen
    buffer_load_dwordx2 v[6:7], v2, s[24:27], s39 offen
    s_lshr_b32 s40, s22, 16
    s_and_b32 s41, s40, 0x8000
    s_and_b32 s42, s40, 0x7fff
    s_xor_b32 s43, s40, 0xffff
    s_cmp_lg_u32 s41, 0
    s_cselect_b32 s40, s42, s43
    s_lshl_b32 s40, s40, 16
    v_mov_b32 v8, s40
    v_mul_f32 v9, 0x{F32_LOG2E:x}, v8
    v_exp_f32 v9, -v9
    s_nop 0
    v_add_f32 v9, 1.0, v9
    v_rcp_f32 v10, v9
    s_nop 0
    v_fma_f32 v11, -v10, v9, 1.0
    v_fma_f32 v10, v11, v10, v10
    v_cvt_pk_bf16_f32 v10, v10, v10
    v_lshlrev_b32 v10, 16, v10
    s_waitcnt vmcnt(0)
    """)
    for j in range(4):
        for kc in range(1, 28):
            k(f"v_add_f32 v{P + j}, v{P + j}, v{P + 4 * kc + j}")
    for j in range(4):
        xn = 4 + (j >> 1)
        x1 = 6 + (j >> 1)
        sh = (j & 1) == 0
        k(f"""
        v_cvt_pk_bf16_f32 v8, v{P + j}, v{P + j}
        v_lshlrev_b32 v8, 16, v8
        v_mul_f32 v8, v8, v10
        v_cvt_pk_bf16_f32 v8, v8, v8
        v_lshlrev_b32 v8, 16, v8
        """)
        if sh:
            k(f"v_lshlrev_b32 v9, 16, v{xn}")
            k(f"v_lshlrev_b32 v11, 16, v{x1}")
        else:
            k(f"v_and_b32 v9, 0xffff0000, v{xn}")
            k(f"v_and_b32 v11, 0xffff0000, v{x1}")
        k(f"""
        v_add_f32 v8, v8, v9
        v_cvt_pk_bf16_f32 v8, v8, v8
        v_lshlrev_b32 v8, 16, v8
        v_add_f32 v8, v8, v11
        v_cvt_pk_bf16_f32 v8, v8, v8
        v_lshlrev_b32 v{12 + j}, 16, v8
        """)
    k(f"""
    v_lshrrev_b32 v8, 16, v12
    v_or_b32 v4, v13, v8
    v_lshrrev_b32 v8, 16, v14
    v_or_b32 v5, v15, v8
    buffer_store_dwordx2 v[4:5], v2, s[28:31], s39 offen
    """)
    if layer == 0:
        def wg_sum(v, tmp, slot):
            for ctl in ("quad_perm:[1,0,3,2]", "quad_perm:[2,3,0,1]", "row_half_mirror", "row_mirror"):
                k("s_nop 1")
                k(f"v_add_f32_dpp v{v}, v{v}, v{v} {ctl} row_mask:0xf bank_mask:0xf")
            k(f"""
            s_nop 1
            v_readlane_b32 s44, v{v}, 0
            v_readlane_b32 s45, v{v}, 16
            v_readlane_b32 s46, v{v}, 32
            v_readlane_b32 s47, v{v}, 48
            v_mov_b32 v{v}, s44
            v_add_f32 v{v}, s45, v{v}
            v_add_f32 v{v}, s46, v{v}
            v_add_f32 v{v}, s47, v{v}
            v_lshrrev_b32 v{tmp}, 6, v0
            v_lshlrev_b32 v{tmp}, 2, v{tmp}
            ds_write_b32 v{tmp}, v{v} offset:{slot}
            s_waitcnt lgkmcnt(0)
            s_barrier
            v_mov_b32 v{tmp}, 0
            ds_read_b128 v[{P}:{P + 3}], v{tmp} offset:{slot}
            s_waitcnt lgkmcnt(0)
            v_add_f32 v{v}, v{P}, v{P + 1}
            v_add_f32 v{P + 2}, v{P + 2}, v{P + 3}
            v_add_f32 v{v}, v{v}, v{P + 2}
            """)
        k(f"""
        v_add_f32 v8, v12, v13
        v_add_f32 v9, v14, v15
        v_add_f32 v8, v8, v9
        """)
        wg_sum(8, 9, 0)
        k(f"""
        v_mul_f32 v8, 0x{F32_INV1024:x}, v8
        v_sub_f32 v9, v12, v8
        v_mul_f32 v10, v9, v9
        v_sub_f32 v9, v13, v8
        v_fmac_f32 v10, v9, v9
        v_sub_f32 v9, v14, v8
        v_fmac_f32 v10, v9, v9
        v_sub_f32 v9, v15, v8
        v_fmac_f32 v10, v9, v9
        """)
        wg_sum(10, 9, 16)
        k(f"""
        v_mul_f32 v10, 0x{F32_INV1024:x}, v10
        v_cvt_pk_bf16_f32 v9, v8, v10
        v_lshlrev_b32 v8, 16, v9
        v_and_b32 v10, 0xffff0000, v9
        v_add_f32 v10, 0x{F32_1EM5:x}, v10
        v_cvt_pk_bf16_f32 v10, v10, v10
        v_lshlrev_b32 v10, 16, v10
        v_sqrt_f32 v10, v10
        s_nop 0
        v_cvt_pk_bf16_f32 v10, v10, v10
        v_lshlrev_b32 v10, 16, v10
        v_rcp_f32 v11, v10
        s_nop 0
        """)
        for h2 in range(2):
            a0, a1 = 12 + 2 * h2, 13 + 2 * h2
            k(f"""
            v_sub_f32 v{a0}, v{a0}, v8
            v_sub_f32 v{a1}, v{a1}, v8
            v_cvt_pk_bf16_f32 v{a0}, v{a0}, v{a1}
            v_and_b32 v{a1}, 0xffff0000, v{a0}
            v_lshlrev_b32 v{a0}, 16, v{a0}
            """)
            div_bf16_pair(k, a0, a1, 10, 11, 4 + h2, P)
        k(f"""
        s_lshr_b32 s44, s38, 5
        s_lshl_b32 s44, s44, 16
        s_and_b32 s45, s38, 31
        s_lshl_b32 s45, s45, 4
        s_add_u32 s44, s44, s45
        v_lshrrev_b32 v8, 2, v0
        v_lshlrev_b32 v8, 10, v8
        v_bfe_u32 v9, v0, 1, 1
        v_lshl_add_u32 v8, v9, 9, v8
        v_and_b32 v9, 1, v0
        v_lshl_add_u32 v8, v9, 3, v8
        buffer_store_dwordx2 v[4:5], v8, s[32:35], s44 offen
        """)
    k(f"{EX}:")
    return k.text(vgpr=136, sgpr=56)


def build():
    parts = []
    launches = []
    parts.append(gen_prep())
    launches.append("; @launch kernel=prep_kernel grid=(384,1,1) block=(512,1,1) lds=16512")
    parts.append(gen_qkv())
    parts.append(gen_ko())
    parts.append(gen_ffn1())
    parts.append(gen_ffn2())
    for layer in range(2):
        parts.append(gen_wo(layer))
        parts.append(gen_ln2(layer))
        parts.append(gen_fix(layer))
        launches.append(f"; @launch kernel=qkv_kernel grid=(256,1,1) block=(256,1,1) lds={K1_NS * K1_STAGE}")
        launches.append(f"; @launch kernel=ko_kernel grid=(256,1,1) block=(256,1,1) lds=18432")
        launches.append(f"; @launch kernel=wo{layer}_kernel grid=(256,1,1) block=(256,1,1) lds={K3_NS * K3_STAGE}")
        launches.append(f"; @launch kernel=ln2_{layer}_kernel grid=(256,1,1) block=(512,1,1) lds={8 * LNP_STRIDE}")
        launches.append(f"; @launch kernel=ffn1_kernel grid=(224,1,1) block=(256,1,1) lds=40960")
        launches.append(f"; @launch kernel=ffn2_kernel grid=(224,1,1) block=(256,1,1) lds=24576")
        launches.append(f"; @launch kernel=fix{layer}_kernel grid=(8,1,1) block=(256,1,1) lds=64")
    hdr = open("interleave_layers__linear_attn_block__moe_arch_mod__prompt.s.ref").read()
    hl = []
    for ln in hdr.split("\n"):
        if not ln.startswith(";"):
            break
        if "@launch" in ln:
            continue
        hl.append(ln)
    text = "\n".join(hl) + "\n" + "\n".join(launches) + "\n"
    text += '.amdgcn_target "amdgcn-amd-amdhsa--gfx950"\n'
    text += "\n".join(parts)
    return text


if __name__ == "__main__":
    out = sys.argv[1] if len(sys.argv) > 1 else "interleave_layers__linear_attn_block__moe_arch_mod__prompt.s"
    open(out, "w").write(build())
    print("wrote", out)
```
